```python
import torch

def _softmax(x, axis=-1):
    return torch.softmax(x, dim=axis)

def _gelu(x):
    return torch.nn.functional.gelu(x, approximate='tanh')

def _silu(x):
    return torch.nn.functional.silu(x)

def _sigmoid(x):
    return torch.sigmoid(x)

def _layernorm(x, axis=-1, eps=1e-05):
    m = x.mean(dim=axis, keepdim=True)
    v = x.var(dim=axis, keepdim=True, unbiased=False)
    return (x - m) / torch.sqrt(v + eps)

def _scatter_add(tgt, idx, src, axis=0):
    return tgt.clone().index_add_(axis, idx, src)

def _segment_sum(src, seg, n):
    out = torch.zeros((n,) + src.shape[1:], dtype=src.dtype)
    return out.index_add_(0, seg, src)

def _pad(x, pw):
    flat = tuple((v for pair in reversed(pw) for v in pair))
    return torch.nn.functional.pad(x, flat)
kernel_name = 'gated_mix__memory_aug_recurrent_mem_tr__glu_gated_bilinear__prompt'

def setup_inputs():

    _w = lambda a: (lambda t: t.to(torch.bfloat16) if t.is_floating_point() else t)(torch.as_tensor(a))

    def _A_setup():
        B, S, Dm = (1, 2048, 576)
        H, Dh = (32, 128)
        M, seg = (8, 32)
        seg = min(seg, S)
        S = S // seg * seg
        return {'x': _w((lambda *s: torch.randn(*s, dtype=torch.bfloat16) * 0.05)(B, S, Dm)), 'mem0': _w((lambda *s: torch.randn(*s, dtype=torch.bfloat16) * 0.4)(B, M, Dm)), 'Wq': _w((lambda *s: torch.randn(*s, dtype=torch.bfloat16) * 6.4)(Dm, H, Dh) * Dm ** (-0.5)), 'Wk': _w((lambda *s: torch.randn(*s, dtype=torch.bfloat16) * 6.4)(Dm, H, Dh) * Dm ** (-0.5)), 'Wv': _w((lambda *s: torch.randn(*s, dtype=torch.bfloat16) * 0.4)(Dm, H, Dh) * Dm ** (-0.5)), 'Wo': _w((lambda *s: torch.randn(*s, dtype=torch.bfloat16) * 0.4)(H, Dh, Dm) * (H * Dh) ** (-0.5)), 'seg_len': seg}
    _A_in = _A_setup()

    def _B_setup():
        B, S, D, F = (1, 2048, 576, 4608)
        return {'x': _w((lambda *s: torch.randn(*s, dtype=torch.bfloat16) * 0.05)(B, S, D)), 'w_gate': _w((lambda *s: torch.randn(*s, dtype=torch.bfloat16) * 1.6)(D, F) * D ** (-0.5)), 'w_up': _w((lambda *s: torch.randn(*s, dtype=torch.bfloat16) * 1.6)(D, F) * D ** (-0.5)), 'w_down': _w((lambda *s: torch.randn(*s, dtype=torch.bfloat16) * 1.6)(F, D) * F ** (-0.5))}
    _B_in = _B_setup()
    return {'A_x': _A_in['x'], 'A_mem0': _A_in['mem0'], 'A_Wq': _A_in['Wq'], 'A_Wk': _A_in['Wk'], 'A_Wv': _A_in['Wv'], 'A_Wo': _A_in['Wo'], 'A_seg_len': _A_in['seg_len'], 'B_x': _B_in['x'], 'B_w_gate': _B_in['w_gate'], 'B_w_up': _B_in['w_up'], 'B_w_down': _B_in['w_down'], 'gate_w': _w((lambda *s: torch.randn(*s, dtype=torch.bfloat16) * 0.05)(576) * 16.0)}

def reference(A_x, A_mem0, A_Wq, A_Wk, A_Wv, A_Wo, A_seg_len, B_x, B_w_gate, B_w_up, B_w_down, gate_w):

    def _A_ref(x, mem0, Wq, Wk, Wv, Wo, seg_len):
        B, S, Dm = x.shape
        H, Dh = (Wq.shape[1], Wq.shape[2])
        M = mem0.shape[1]
        scale = Dh ** (-0.5)
        n_seg = S // seg_len
        L = M + seg_len
        idx = torch.arange(L)
        mask = (idx[:, None] < M) | (idx[:, None] >= idx[None, :])
        mem = mem0
        outs = []
        for s in range(n_seg):
            xs = x[:, s * seg_len:(s + 1) * seg_len, :].clone()
            h = torch.concatenate([mem, xs], axis=1)
            q = torch.einsum('btd,dhe->bhte', h, Wq)
            k = torch.einsum('btd,dhe->bhte', h, Wk)
            v = torch.einsum('btd,dhe->bhte', h, Wv)
            scores = torch.einsum('bhqe,bhke->bhqk', q, k) * scale
            scores = torch.where(mask[None, None], scores, -1000000000.0)
            p = _softmax(scores, axis=-1)
            o = torch.einsum('bhqk,bhke->bhqe', p, v)
            o = torch.einsum('bhte,hed->btd', o, Wo)
            mem = o[:, :M, :].clone()
            outs.append(o[:, M:, :])
        return torch.concatenate(outs, axis=1)

    def _B_ref(x, w_gate, w_up, w_down):
        g = torch.einsum('bsd,df->bsf', x, w_gate)
        u = torch.einsum('bsd,df->bsf', x, w_up)
        h = g * u
        return torch.einsum('bsf,fd->bsd', h, w_down)
    x = A_x
    g = _sigmoid((x * gate_w).sum(-1, keepdims=True))
    a = _A_ref(x, A_mem0, A_Wq, A_Wk, A_Wv, A_Wo, A_seg_len)
    b = _B_ref(x, B_w_gate, B_w_up, B_w_down)
    return g * a + (1 - g) * b
```

```python
import re
class Asm:
    def __init__(self):
        self.lines = []
    def __call__(self, s):
        for l in s.split("\n"):
            l = l.rstrip()
            if l.strip(): self.lines.append(l if l.endswith(":") or l.startswith(".") else "  " + l.strip())
    def label(self, n): self.lines.append(n + ":")
    def comment(self, c): self.lines.append("  ; " + c)
    def text(self): return "\n".join(self.lines) + "\n"
    def extend(self, lst):
        for l in lst: self(l)

def vr(b, n=1, k="v"):
    return f"{k}{b}" if n == 1 else f"{k}[{b}:{b+n-1}]"
def ar(b, n=1): return vr(b, n, "a")
def sr(b, n=1): return vr(b, n, "s")

_reg_re = re.compile(r"\b([vas])(\d+)\b|\b([vas])\[(\d+):(\d+)\]")
def regs_of(op):
    out = set()
    for m in _reg_re.finditer(op):
        if m.group(1): out.add((m.group(1), int(m.group(2))))
        else:
            for i in range(int(m.group(4)), int(m.group(5)) + 1): out.add((m.group(3), i))
    if re.search(r"\bvcc\b", op): out.add(("s", "vcc"))
    if re.search(r"\bexec\b", op): out.add(("s", "exec"))
    if re.search(r"\bm0\b", op): out.add(("s", "m0"))
    return out
def split_ops(line):
    line = line.split(";")[0].strip()
    if not line or line.endswith(":") or line.startswith("."): return None, []
    p = line.split(None, 1)
    mn = p[0]
    ops = []
    if len(p) > 1:
        depth = 0; cur = ""
        for ch in p[1]:
            if ch == "[": depth += 1
            if ch == "]": depth -= 1
            if ch == "," and depth == 0: ops.append(cur.strip()); cur = ""
            else: cur += ch
        ops.append(cur.strip())
    return mn, ops
TRANS = ("v_exp_f32", "v_log_f32", "v_rcp_f32", "v_rsq_f32", "v_sqrt_f32", "v_sin_f32", "v_cos_f32")
def classify(mn, ops):
    d = dict(kind="other", w=set(), r=set(), mn=mn)
    R = [regs_of(o) for o in ops]
    if mn.startswith("v_mfma") or mn.startswith("v_smfmac"):
        d["kind"] = "mfma"
        d["passes"] = 8 if "32x32" in mn else 4
        d["w"] = R[0]; d["A"] = R[1]; d["B"] = R[2]
        if mn.startswith("v_smfmac"):
            d["C"] = R[0]; d["idx"] = R[3]
        else:
            d["C"] = R[3]; d["idx"] = set()
        d["r"] = d["A"] | d["B"] | d["C"] | d["idx"]
    elif mn.startswith("v_cmp"):
        d["kind"] = "valu"; d["w"] = R[0]; d["r"] = set().union(*R[1:])
        if mn.startswith("v_cmpx"): d["w"] = d["w"] | {("s", "exec")}
    elif mn.startswith("v_permlane") and "swap" in mn:
        d["kind"] = "valu"; d["perm"] = True; d["w"] = R[0] | R[1]; d["r"] = R[0] | R[1]
    elif mn.startswith("v_readfirstlane") or mn.startswith("v_readlane"):
        d["kind"] = "valu"; d["rl"] = True; d["w"] = R[0]; d["r"] = set().union(*R[1:])
    elif mn.startswith("v_nop"):
        d["kind"] = "valu"
    elif mn.startswith("v_"):
        d["kind"] = "valu"; d["w"] = set(R[0]); d["r"] = set().union(*R[1:]) if len(R) > 1 else set()
        if "_co_" in mn: d["w"] |= R[1]
        if mn.startswith("v_fmac") or mn.startswith("v_dot2c") or mn.startswith("v_pk_fmac"): d["r"] |= R[0]
        if mn.startswith("v_cndmask") and len(ops) == 3: d["r"] |= {("s", "vcc")}
        if any(mn.startswith(t) for t in TRANS): d["trans"] = True
        if "dpp" in mn or any("row_" in o or "quad_perm" in o for o in ops): d["dpp"] = True;
        if d.get("dpp"): d["r"] |= R[0]
    elif mn.startswith("ds_"):
        d["kind"] = "ds"
        if mn.startswith("ds_read") or mn.startswith("ds_bpermute") or mn.startswith("ds_swizzle") or "_rtn" in mn:
            d["w"] = R[0]; d["r"] = set().union(*R[1:])
        else: d["r"] = set().union(*R)
    elif mn.startswith("buffer_") or mn.startswith("global_"):
        d["kind"] = "vmem"
        lds = any(re.search(r"\blds\b", o) for o in ops) or "lds" in mn
        if "load" in mn and not lds:
            d["w"] = R[0]; d["r"] = set().union(*R[1:])
        elif "atomic" in mn and any("sc0" in o for o in ops):
            d["w"] = R[0]; d["r"] = set().union(*R)
        else:
            d["r"] = set().union(*R) if R else set()
            if lds: d["r"] |= {("s", "m0")}; d["ldsdma"] = True
            if "store" in mn and ("x4" in mn or "x3" in mn):
                d["wide_store"] = R[0] if mn.startswith("buffer_") else R[1]
    elif mn.startswith("s_"):
        d["kind"] = "salu"
        if mn in ("s_nop",): d["nop"] = int(ops[0], 0) + 1
        elif mn.startswith(("s_cmp", "s_cbranch", "s_branch", "s_waitcnt", "s_barrier", "s_endpgm", "s_sleep", "s_setprio", "s_bitcmp")):
            d["r"] = set().union(*R) if R else set()
        else:
            d["w"] = R[0] if R else set(); d["r"] = set().union(*R[1:]) if len(R) > 1 else set()
            if "saveexec" in mn: d["w"] = d["w"] | {("s", "exec")}
    return d

def need(p, c):
    n = 0
    pk, ck = p["kind"], c["kind"]
    vw = {x for x in p["w"] if x[0] in "va"}
    sw = {x for x in p["w"] if x[0] == "s"}
    if pk == "valu":
        if ck == "mfma" and vw & c["r"]: n = max(n, 2)
        if ck == "mfma" and ("s", "exec") in sw: n = max(n, 4)
        if c.get("perm") and vw & c["r"]: n = max(n, 2)
        if c.get("dpp") and vw & c["r"]: n = max(n, 2)
        if c.get("dpp") and ("s", "exec") in sw: n = max(n, 5)
        if c.get("rl") and vw & c["r"]: n = max(n, 1)
        if c.get("rl") and sw & c["r"]: n = max(n, 4)
        if p.get("trans") and ck == "valu" and vw & c["r"]: n = max(n, 1)
        if p.get("trans") and ck in ("ds", "vmem") and vw & c["r"]: n = max(n, 1)
        if ck == "valu" and sw & c["r"]: n = max(n, 2)
        if ck == "vmem" and sw & c["r"]: n = max(n, 5)
        if ck == "salu" and sw & c["r"] and not c["mn"].startswith("s_cbranch"): n = max(n, 1)
    if pk == "salu":
        if ("s", "m0") in sw and c.get("ldsdma"): n = max(n, 1)
    if pk == "mfma":
        P = p["passes"]
        if ck == "mfma":
            if p["w"] & (c["A"] | c["B"] | c["idx"]): n = max(n, P + 4)
            if p["w"] & c["C"]:
                if not (p["w"] == c["C"] and p["mn"] == c["mn"]): n = max(n, P + 2)
            elif p["w"] & c["w"]: n = max(n, P + 4)
        elif ck in ("valu", "ds", "vmem"):
            if p["w"] & (c["r"] | c["w"]): n = max(n, P + 4)
            if ck == "valu" and p["C"] & c["w"]: n = max(n, P - 1)
    if p.get("wide_store") and (p["wide_store"] & c["w"]): n = max(n, 2)
    return n

def _gap_states(seq):
    p = seq[0]
    if p["kind"] != "mfma":
        return sum(x.get("nop", 1) for x in seq[1:-1])
    t = 0; lastm = 0; lastp = p
    for x in seq[1:]:
        prev_cost = 4 * (cur_nop if (cur_nop := _n(seq, x)) else 1)
        t += prev_cost
        if x["kind"] == "mfma": t = max(t, lastm + 4 * lastp["passes"])
        elif x["kind"] == "valu": t = max(t, lastm + (12 if lastp["mn"].startswith("v_smfmac") else 8))
        if x["kind"] == "mfma": lastm = t; lastp = x
    return t // 4 - 1
def _n(seq, x):
    i = [k for k, y in enumerate(seq) if y is x][0]
    return seq[i-1].get("nop", 1)

def _required_pad(hist, c):
    pad = 0; why = None
    for k in range(len(hist) - 1, max(-1, len(hist) - 24), -1):
        p = hist[k]
        n = need(p, c)
        if n:
            d = _gap_states(hist[k:] + [c])
            if n - d > pad: pad = n - d; why = (p, n, d)
        if p["mn"] in ("s_branch", "s_endpgm"): break
    return pad, why

def check(lines, verbose=True):
    hist = []; bad = 0
    for i, l in enumerate(lines):
        mn, ops = split_ops(l)
        if mn is None: continue
        c = classify(mn, ops); c["line"] = i; c["text"] = l.strip()
        pad, why = _required_pad(hist, c)
        if pad > 0:
            bad += 1
            if verbose: print(f"HAZARD need {why[1]} have {why[2]}: [{why[0]['line']}] {why[0]['text']}  ->  [{i}] {c['text']}")
        hist.append(c); hist = hist[-24:]
    return bad

def autopad(lines, report=None):
    out = []; hist = []
    for l in lines:
        mn, ops = split_ops(l)
        if mn is None:
            out.append(l); continue
        c = classify(mn, ops); c["text"] = l.strip()
        while True:
            pad, why = _required_pad(hist, c)
            if pad <= 0: break
            if out and out[-1].startswith("  s_nop") and out[-1].endswith(";ap") and hist[-1]["nop"] < 16:
                k = hist[-1]["nop"] + 1
                out[-1] = f"  s_nop {k-1} ;ap"; hist[-1] = classify("s_nop", [str(k-1)])
            else:
                out.append("  s_nop 0 ;ap"); hist.append(classify("s_nop", ["0"]))
        out.append(l); hist.append(c); hist = hist[-24:]
    return out

class Cnt:
    def __init__(self, a, name, maxn):
        self.a = a; self.name = name; self.maxn = maxn; self.q = []; self.done = 0
    def issue(self, text, tag=None):
        self.a(text); self.q.append(tag)
    def need(self, *tags):
        idx = max(max(i for i, t in enumerate(self.q) if t == tag) for tag in tags)
        if idx < self.done: return
        n = len(self.q) - 1 - idx
        assert n <= self.maxn, (self.name, n)
        self.a(f"s_waitcnt {self.name}({n})"); self.done = idx + 1
    def drain(self):
        if self.done < len(self.q): self.a(f"s_waitcnt {self.name}(0)")
        self.done = len(self.q)
    def assume_drained(self): self.done = len(self.q)
```

```python
from common import *
UST = 4224
TSDUMP = 0x170000
L_IMG, L_QKX, L_WSCR, L_SEL, L_OX, L_KEY, L_W = 0, 9216, 13568, 13824, 14336, 16384, 24576
NLDS = 17
assert L_W + NLDS*8192 == 163840

(sH, sWv, sStep, sT0, sT1, sT2, sT3, sSpin, sC, sUnitOK, sPar, sKoff, sVoff, sExpK, sExpV, sSlow,
 sW11, sProg, sRed, sHp0, sHp1, sHp2, sHp3, sImg, sImg8, sWarm) = range(20, 46)
sEX0 = 46
sTyB, sSelO = 48, 49
sTim = 60

vIdx, vIW, vIW4, vQKW, vQKR, vOW, vH1, vH19, vImgS, vWb = range(10)
vVc = 10

def qkv_seq():
    seq = []
    for i in range(0, 6): seq += [("q",i,0),("q",i,1),("k",i,0),("k",i,1),("v",i,0),("v",i,1)]
    for i in range(6, 9): seq += [("q",i,0),("q",i,1),("k",i,0),("k",i,1)]
    for i in range(6, 9): seq += [("v",i,0),("v",i,1)]
    return seq
SEQ = qkv_seq()
STREAM_POS = list(range(5, 54, 3))
assert len(STREAM_POS) == NLDS
LDS_SLOT = {SEQ[p]: s for s, p in enumerate(STREAM_POS)}
WO_OPS = [("p", p, jl) for p in range(4) for jl in range(4)] + [("s", 0, 0), ("s", 0, 1)]
RES = [op for op in SEQ if op not in LDS_SLOT] + WO_OPS
assert len(RES) == 55
def res_reg(op):
    i = RES.index(op)
    return ("a", i*8) if i < 32 else ("v", 72 + (i-32)*8)
def opstr(r, n=8): return vr(r[1], n, r[0])
def wslot_addr(slot, half, b1=vWb, b2=vWb):
    off = L_W + slot*8192 + half*1024
    if off < 65536: return f"v{vIW}", off
    if off < 131072: return f"v{b1}", off - 65536
    return f"v{b2}", off - 131072

def spin_guard(a):
    a(f"s_add_u32 s{sSpin}, s{sSpin}, 1\ns_cmp_gt_u32 s{sSpin}, 0x40000\ns_cbranch_scc1 L_abort")

def load_weights(a):
    groups = [(mat, i) for mat in "qkv" for i in range(9)] + [("s", kk) for kk in range(2)] + [("p", (p, j2)) for p in range(4) for j2 in range(2)]
    vOffQ, vOffP, vOffS, vSelLo, vSelHi = 66, 67, 68, 69, 70
    a(f"""v_and_b32 v16, 63, v71
    v_and_b32 v17, 15, v16                       ; n
    v_lshrrev_b32 v18, 4, v16                    ; gb
    v_lshrrev_b32 v19, 1, v18                    ; gb/2
    v_and_b32 v20, 1, v18
    v_lshlrev_b32 v20, 2, v20                    ; 4*(gb%2)
    v_lshl_add_u32 v22, v19, 4, v20              ; 16*(gb/2)+4*(gb%2)
    v_lshl_add_u32 v23, v19, 3, v20              ; 8*(gb/2)+4*(gb%2)
    s_lshl_b32 s{sT0}, s{sH}, 8
    s_lshl_b32 s{sT1}, s{sWv}, 6
    s_add_u32 s{sT0}, s{sT0}, s{sT1}
    v_lshlrev_b32 v21, 13, v22
    v_lshl_add_u32 v21, v17, 2, v21
    v_add_u32 v{vOffQ}, s{sT0}, v21
    s_mul_i32 s{sT0}, s{sH}, {128*1152}
    s_lshl_b32 s{sT1}, s{sWv}, 8
    s_add_u32 s{sT1}, s{sT1}, s{sT0}
    v_mul_u32_u24 v21, 1152, v23
    v_add_u32 v21, s{sT1}, v21
    v_lshl_add_u32 v{vOffP}, v17, 2, v21
    s_lshl_b32 s{sT1}, s{sWv}, 5
    s_add_u32 s{sT1}, s{sT1}, s{sT0}
    v_mul_u32_u24 v21, 1152, v22
    v_add_u32 v21, s{sT1}, v21
    v_lshl_add_u32 v{vOffS}, v17, 1, v21
    v_mov_b32 v{vSelLo}, 0x05040100
    v_mov_b32 v{vSelHi}, 0x07060302
    v_add_u32 v26, 0x10000, v{vIW}
    v_add_u32 v27, 0x20000, v{vIW}""")
    cur = [None]
    def base_of(gi): return [28, 44, 10][gi % 3]
    def issue(gi):
        mat, x = groups[gi]
        key = mat if mat in "qkv" else "o"
        if cur[0] != key:
            ka = {"q": KA_WQ, "k": KA_WK, "v": KA_WV, "o": KA_WO}[key]
            a(f"s_load_dwordx2 s[{sEX0}:{sEX0+1}], s[0:1], {ka}\ns_waitcnt lgkmcnt(0)")
            srd(a, S_W, sEX0, sEX0+1, 576*4096*2)
            cur[0] = key
        base = base_of(gi)
        if key != "o":
            if x < 8: a(f"s_lshl_b32 s{sT1}, s{sWv}, 1\ns_xor_b32 s{sT1}, s{sT1}, {x}\ns_lshl_b32 s{sT1}, s{sT1}, 19")
            else: a(f"s_mov_b32 s{sT1}, {8 << 19}")
            for i in range(8):
                for e in range(2):
                    row = 32*(i//4) + 8*(i%2) + 2*((i%4)//2) + e
                    a(f"s_add_u32 s{sT0}, s{sT1}, {row*8192}\nbuffer_load_dword v{base+2*i+e}, v{vOffQ}, {SW}, s{sT0} offen")
        elif mat == "s":
            for i in range(8):
                for e in range(2):
                    row = 64*x + 32*(i//4) + 8*(i%2) + 2*((i%4)//2) + e
                    a(f"s_mov_b32 s{sT0}, {row*1152}\nbuffer_load_ushort v{base+2*i+e}, v{vOffS}, {SW}, s{sT0} offen offset:1024")
        else:
            p, j2 = x
            for jj in range(2):
                a(f"s_xor_b32 s{sT1}, s{sWv}, {2*j2+jj}\ns_mul_i32 s{sT1}, s{sT1}, {32*1152}")
                for i4 in range(4):
                    for e in range(2):
                        row = 16*(i4//2) + 2*(i4%2) + e
                        a(f"s_add_u32 s{sT0}, s{sT1}, {row*1152}\nbuffer_load_dword v{base+8*jj+2*i4+e}, v{vOffP}, {SW}, s{sT0} offen offset:{64*p}")
    def put(op, srcs):
        d = None if op in LDS_SLOT else res_reg(op)
        if d is not None and d[0] == "v":
            for i, (hi, lo, sel) in enumerate(srcs): a(f"v_perm_b32 v{d[1]+i}, v{hi}, v{lo}, v{sel}")
            return
        if d is not None:
            for i, (hi, lo, sel) in enumerate(srcs): a(f"v_perm_b32 v{60+i%4}, v{hi}, v{lo}, v{sel}\nv_accvgpr_write_b32 a{d[1]+i}, v{60+i%4}")
        else:
            for hf in range(2):
                for i in range(4):
                    hi, lo, sel = srcs[4*hf+i]; a(f"v_perm_b32 v{60+i}, v{hi}, v{lo}, v{sel}")
                ad, off = wslot_addr(LDS_SLOT[op], hf, 26, 27)
                a(f"ds_write_b128 {ad}, v[60:63] offset:{off}\ns_waitcnt lgkmcnt(0)")
    def finish(gi):
        mat, x = groups[gi]; b = base_of(gi)
        if mat in "qkv":
            for t in range(2): put((mat, x, t), [(b+2*i+1, b+2*i, vSelLo if t == 0 else vSelHi) for i in range(8)])
        elif mat == "s": put(("s", 0, x), [(b+2*i+1, b+2*i, vSelLo) for i in range(8)])
        else:
            p, j2 = x
            for jj in range(2): put(("p", p, 2*j2+jj), [(b+8*jj+2*(i//2)+1, b+8*jj+2*(i//2), vSelLo if i % 2 == 0 else vSelHi) for i in range(8)])
    n = len(groups)
    issue(0); issue(1)
    for gi in range(n):
        if gi + 2 < n: issue(gi+2); a("s_waitcnt vmcnt(32)")
        elif gi + 1 < n: a("s_waitcnt vmcnt(16)")
        else: a("s_waitcnt vmcnt(0)")
        finish(gi)

def setup(a):
    a(f"""v_mov_b32 v71, v0
    v_lshrrev_b32 v16, 6, v71
    s_nop 0
    v_readfirstlane_b32 s{sWv}, v16
    v_and_b32 v16, 63, v71                       ; lane
    v_and_b32 v17, 15, v16                       ; n
    v_lshrrev_b32 v18, 4, v16                    ; g
    v_lshrrev_b32 v19, 2, v17                    ; n/4
    v_and_b32 v20, 1, v17                        ; n%2
    v_lshl_add_u32 v21, v19, 1, v20              ; rho
    v_bfe_u32 v22, v17, 1, 1                     ; half
    s_lshl_b32 s{sW11}, s{sWv}, 11
    v_lshlrev_b32 v23, 4, v16
    v_add_u32 v{vIW}, s{sW11}, v23
    s_lshl_b32 s{sT0}, s{sWv}, 8
    v_lshlrev_b32 v24, 2, v16
    v_add_u32 v{vIW4}, s{sT0}, v24
    v_mov_b32 v24, 0xeeeeeeee
    v_mov_b32 v25, 0x44444444
    v_cmp_eq_u32 vcc, 0, v22
    s_nop 1
    v_cndmask_b32 v{vIdx}, v24, v25, vcc
    v_mul_u32_u24 v24, 1088, v18
    v_lshl_add_u32 v24, v17, 2, v24
    s_lshl_b32 s{sT0}, s{sWv}, 6
    s_add_u32 s{sT0}, s{sT0}, {L_QKX}
    v_add_u32 v{vQKW}, s{sT0}, v24
    v_mul_u32_u24 v24, 544, v21
    v_lshl_add_u32 v24, v18, 4, v24
    v_add_u32 v{vQKR}, {L_QKX}, v24
    ; OW = OX + w*512 + (g/2)*256 + (4(n/4) + 2(g%2) + n%2)*16
    v_and_b32 v24, 1, v18
    v_lshl_add_u32 v24, v24, 1, v20
    v_lshl_add_u32 v24, v19, 2, v24
    v_lshlrev_b32 v24, 4, v24
    v_lshrrev_b32 v25, 1, v18
    v_lshl_add_u32 v24, v25, 8, v24
    s_lshl_b32 s{sT0}, s{sWv}, 9
    s_add_u32 s{sT0}, s{sT0}, {L_OX}
    v_add_u32 v{vOW}, s{sT0}, v24
    ; H1 = (16w + g)*UST + h*128 + 8n
    v_mul_u32_u24 v24, {UST}, v18
    v_lshl_add_u32 v24, v17, 3, v24
    s_mul_i32 s{sT0}, s{sWv}, {16*UST}
    s_lshl_b32 s{sT1}, s{sH}, 7
    s_add_u32 s{sT0}, s{sT0}, s{sT1}
    v_add_u32 v{vH1}, s{sT0}, v24
    ; H19 = (64 + 2w + g/2)*UST + h*128 + 4*(l%32)
    v_mul_u32_u24 v24, {UST}, v25
    v_and_b32 v26, 31, v16
    v_lshl_add_u32 v24, v26, 2, v24
    s_mul_i32 s{sT0}, s{sWv}, {2*UST}
    s_add_u32 s{sT0}, s{sT0}, s{sT1}
    s_add_u32 s{sT0}, s{sT0}, {64*UST}
    v_add_u32 v{vH19}, s{sT0}, v24
    ; unit u = h + 32w
    s_lshl_b32 s{sT0}, s{sWv}, 5
    s_add_u32 s{sT0}, s{sT0}, s{sH}
    s_cmp_lt_u32 s{sT0}, 72
    s_cselect_b32 s{sUnitOK}, 1, 0
    s_mul_i32 s{sRed}, s{sT0}, {UST}
    s_sub_u32 s{sRed}, s{sRed}, s{sW11}
    s_add_u32 s{sRed}, s{sRed}, {H1}
    ; img store address. c = n%8, d = g
    ; pair unit u = 16wp + 4p + gp : base = (2wp + p/2)*1024 + (p%2)*512 + gp*64 = (u>>2)*512 + (u&3)*64 ; mult 256
    s_lshr_b32 s{sT1}, s{sT0}, 2
    s_lshl_b32 s{sT1}, s{sT1}, 9
    s_and_b32 s{sT2}, s{sT0}, 3
    s_lshl_b32 s{sT2}, s{sT2}, 6
    s_add_u32 s{sT1}, s{sT1}, s{sT2}
    s_lshl_b32 s{sT2}, s{sH}, 7
    s_add_u32 s{sT2}, s{sT2}, 8192
    s_cmp_eq_u32 s{sWv}, 2
    s_cselect_b32 s{sT1}, s{sT2}, s{sT1}
    s_cselect_b32 s{sT2}, 6, 8
    s_cselect_b32 s{sTyB}, 1, 0
    s_cselect_b32 s{sSelO}, 256, 0
    v_bfe_u32 v24, v17, 2, 1                     ; c/4
    v_lshlrev_b32 v24, s{sT2}, v24
    v_lshl_add_u32 v24, v22, 5, v24              ; ((c/2)%2)*32
    v_and_b32 v26, 1, v18
    v_lshl_add_u32 v24, v26, 4, v24              ; (d%2)*16
    v_lshl_add_u32 v24, v20, 3, v24              ; (c%2)*8
    v_lshl_add_u32 v24, v25, 2, v24              ; (d/2)*4
    v_add_u32 v{vImgS}, s{sT1}, v24
    s_mov_b32 s{sC}, {f32(C_SCALE)}
    s_lshl_b32 s{sT0}, s{sH}, 7
    s_add_u32 s{sT0}, s{sT0}, {PROG}
    s_mov_b32 s{sT1}, {32*8192 - 24576}
    s_cmp_eq_u32 s{sWv}, 3
    s_cselect_b32 s{sProg}, s{sT0}, {OOB}
    s_cselect_b32 s{sWarm}, s{sT1}, {OOB}
    s_mov_b32 s{sHp0}, {H1}
    s_mov_b32 s{sHp1}, {H1 + 4*UST}
    s_mov_b32 s{sHp2}, {H1 + 8*UST}
    s_mov_b32 s{sHp3}, {H1 + 12*UST}
    s_mov_b32 s{sImg}, {IMG}
    s_mov_b32 s{sImg8}, {IMG + 8192}
    s_mov_b32 m0, {L_WSCR}
    ; selectors: type A element jj = rho(m) ; type B jj = 4((m/4)/2) + (m/4)%2 + 2(m%2)
    v_lshrrev_b32 v24, 1, v19
    v_and_b32 v26, 1, v19
    v_lshl_add_u32 v24, v24, 2, v26
    v_lshl_add_u32 v24, v20, 1, v24              ; jjB
    v_lshlrev_b32 v27, 4, v17
    v_add_u32 v27, {L_SEL}, v27""")
    for ty, r in ((0, 21), (1, 24)):
        a(f"""v_and_b32 v28, 1, v{r}
        v_lshlrev_b32 v28, 4, v28
        v_mov_b32 v29, 0x3f80
        v_lshlrev_b32 v28, v28, v29
        v_lshrrev_b32 v29, 1, v{r}""")
        for i in range(4): a(f"v_cmp_eq_u32 vcc, {i}, v29\ns_nop 1\nv_cndmask_b32 v{32+i}, 0, v28, vcc")
        a(f"ds_write_b128 v27, v[32:35] offset:{256*ty}")

def arm(a):
    a(f"""v_mov_b32 v16, 0
    v_mov_b32 v17, 0
    v_mov_b32 v18, 0
    v_mov_b32 v19, 0
    s_cmp_eq_u32 s{sUnitOK}, 0
    s_cbranch_scc1 L_noarm""")
    for i in range(4): a(f"buffer_store_dwordx4 v[16:19], v{vIW}, {WS}, s{sRed} offen offset:{i*1024} sc1")
    a(f"""buffer_store_dword v16, v{vImgS}, {WS}, s{sImg} offen sc1
    L_noarm:
    buffer_store_dword v16, off, {WS}, s{sProg} sc1
    s_waitcnt vmcnt(0)
    s_barrier""")

NST = 10
def stamp(a, i, timing):
    if timing == 2: a(f"s_memtime s[{sTim+2*i}:{sTim+2*i+1}]")
    if timing == 3: a(f"s_memrealtime s[{sTim+2*i}:{sTim+2*i+1}]")
def SM(d, A, B): return f"v_smfmac_f32_16x16x64_bf16 v[{d}:{d+3}], v[{A}:{A+3}], {B}, v{vIdx}"
def MF(d, A, B, first): return f"v_mfma_f32_16x16x32_bf16 v[{d}:{d+3}], v[{A}:{A+3}], v[{B}:{B+3}], " + ("0" if first else f"v[{d}:{d+3}]")
def delay(a, n):
    while n > 0:
        k = min(n, 16); a(f"s_nop {k-1}"); n -= k
def t3(par, d, x, y, z):
    return f"v_bitop3_b32 v{d}, v{x}, v{y}, v{z} bitop3:0x80" if par else f"v_or3_b32 v{d}, v{x}, v{y}, v{z}"
def tfin(par, d):
    return f"v_and_b32 v{d}, 1, v{d}\nv_cmp_ne_u32 vcc, {par}, v{d}"

def step_body(a, sfx, sc, timing=0, NFL1=2, D1=10, S1=0, NFL2=2, D2=10, S2=25, LAST=63, NOEXP=False, NOPF=False, NOWARM=False, TSTEP=30, NOSTREAM=False, WSAME=False, NOA=False):
    L = lambda n: f"L_{n}{sfx}"
    def round2():
        a(f"""buffer_load_dwordx4 v[18:21], v{vIW}, {WS}, s{sImg} offen sc1
        buffer_load_dwordx4 v[22:25], v{vIW}, {WS}, s{sImg} offen offset:1024 sc1
        buffer_load_dword v26, v{vIW4}, {WS}, s{sImg8} offen sc1""")
    a.label(L("step"))
    a("s_barrier")
    stamp(a, 0, timing)
    a(f"s_mov_b32 s{sSpin}, 0")
    if NFL1 == 2: a("s_waitcnt vmcnt(1)")
    for r in range(28, 44, 2): a(f"v_mov_b64 v[{r}:{r+1}], 0")
    delay(a, D2)
    if NFL2 == 2: round2(); delay(a, S2)
    a(f"s_cmp_eq_u32 s{sPar}, 0\ns_cbranch_scc1 {L('p2_0')}")
    for par in (1, 0):
        a.label(L(f"p2_{par}"))
        round2()
        spin_guard(a)
        a(f"s_waitcnt vmcnt({3*(NFL2-1)})")
        a(t3(par, 27, 18, 19, 20)); a(t3(par, 68, 21, 22, 23)); a(t3(par, 27, 27, 24, 25)); a(t3(par, 27, 27, 68, 26))
        a(f"""ds_write_b128 v{vIW}, v[18:21]
        ds_write_b128 v{vIW}, v[22:25] offset:1024
        ds_write_b32 v{vIW4}, v26 offset:8192""")
        a(tfin(par, 27))
        if par == 1: a(f"s_cbranch_vccz {L('have_img')}\ns_branch {L('p2_1')}")
        else: a(f"s_cbranch_vccnz {L('p2_0')}")
    a.label(L("have_img"))
    stamp(a, 1, timing)
    lg = Cnt(a, "lgkmcnt", 15)
    lg.q = ["iw0", "iw1", "iw2"]
    acc = {"q": 28, "k": 36, "v": 44}
    Bbuf = [52, 60]
    X = [68, 18, 22]
    Areg = {0: 18, 1: 22}
    for i in range(2, 9): Areg[i] = X[(i-2) % 3]
    nv = {p: [] for p in range(-1, len(SEQ))}; va = {p: [] for p in range(-1, len(SEQ))}
    T = lambda s: (lambda: a(s))
    def wread(s, hf):
        def f():
            ad, off = wslot_addr(s, hf); b = Bbuf[s % 2] + 4*hf
            lg.issue(f"ds_read_b128 v[{b}:{b+3}], {ad} offset:{off}", ("w", s))
        return f
    for s in range(NLDS):
        g0 = STREAM_POS[s-2] if s >= 2 else 2*s
        if NOSTREAM: continue
        nv[g0].append(wread(s, 0)); nv[g0+(0 if WSAME and s >= 2 else 1)].append(wread(s, 1))
    va[1].append(T(f"v_add_u32 v{vWb}, 0x10000, v{vIW}"))
    va[STREAM_POS[13-2]-1].append(T(f"v_add_u32 v{vWb}, 0x20000, v{vIW}"))
    BAR = 4
    def aaddr(i):
        r = Areg[i]
        if i < 8: return T(f"v_xor_b32 v{r}, {(i//2) << 11}, v{vIW}")
        return T(f"v_xor_b32 v{r}, s{sW11}, v{vIW}")
    def aread(i):
        r = Areg[i]; off = (i % 2)*1024 if i < 8 else 8192
        return lambda: lg.issue(f"ds_read_b128 v[{r}:{r+3}], v{r} offset:{off}", ("A", i))
    lastuse = {i: max(p for p, op in enumerate(SEQ) if op[1] == i) for i in range(9)}
    va[2].append(aaddr(2))
    nv[BAR].insert(0, lambda: (lg.need("iw2"), a("s_barrier"), stamp(a, 2, timing)))
    nv[BAR+1].insert(0, aread(2))
    if NFL2 == 2: nv[7].append(T("s_waitcnt vmcnt(0)"))
    va[7].append(aaddr(3)); nv[10].append(aread(3))
    for i in range(4, 9):
        pu = lastuse[i-3]
        va[pu].append(aaddr(i)); nv[pu+2].append(aread(i))
    st = 0 if NOPF else 32*8192
    for p, s in {7: f"s_add_u32 s{sStep}, s{sStep}, 1\ns_xor_b32 s{sPar}, s{sPar}, 1", 16: f"s_add_u32 s{sKoff}, s{sKoff}, {st}\ns_add_u32 s{sVoff}, s{sVoff}, {st}",
                 22: f"s_add_u32 s{sT0}, s{sKoff}, s{sWarm}\ns_add_u32 s{sT1}, s{sVoff}, s{sWarm}",
                 34: f"s_add_u32 s{sExpK}, s{sExpK}, {32*8192}\ns_add_u32 s{sExpV}, s{sExpV}, {32*8192}"}.items(): nv[p].append(T(s))
    va[12].append(T(f"v_mov_b32 v26, s{sStep}"))
    nv[15].append(T(f"buffer_store_dword v26, off, {WS}, s{sProg} sc1"))
    va[20].append(T(f"v_lshlrev_b32 v27, 5, v{vIW4}"))
    if not NOWARM:
        nv[24].append(T(f"buffer_load_dword v27, {WS}, s{sT0} offen sc1 lds"))
        nv[28].append(T(f"buffer_load_dword v27, {WS}, s{sT1} offen sc1 lds"))
    va[40].append(T(f"v_xor_b32 v27, s{sW11}, v{vIW}"))
    def post(d):
        return [f"v_add_f32 v{d}, v{d}, v{d+2}", f"v_add_f32 v{d+1}, v{d+1}, v{d+3}", f"v_add_f32 v{d+4}, v{d+4}, v{d+6}", f"v_add_f32 v{d+5}, v{d+5}, v{d+7}",
                f"v_cvt_pk_bf16_f32 v{d}, v{d}, v{d+4}", f"v_cvt_pk_bf16_f32 v{d+1}, v{d+1}, v{d+5}"]
    pq = post(28); pk = post(36)
    va[46].append(T(pq[0])); va[47].append(T(pq[1])); va[48] += [T(pq[2]), T(pq[3])]
    va[49] += [T(pq[4]), T(pq[5]), lambda: lg.issue(f"ds_write2_b32 v{vQKW}, v28, v29 offset0:0 offset1:136", ("xw", 0))] + [T(x) for x in pk] + \
              [lambda: lg.issue(f"ds_write2_b32 v{vQKW}, v36, v37 offset0:68 offset1:204", ("xw", 1))]
    KX = [18, 60, 64, 22, 68, 52, 56, 60]
    def kx(f): r = KX[f]; lg.issue(f"ds_read_b128 v[{r}:{r+3}], v27 offset:{L_KEY + f*1024}", ("kx", f))
    if not NOEXP:
        nv[50].append(T(f"buffer_store_dword v36, v{vQKW}, {WS}, s{sExpK} offen sc1"))
        nv[51].append(T(f"buffer_store_dword v37, v{vQKW}, {WS}, s{sExpK} offen offset:544 sc1"))
    nv[50].append(lambda: kx(0))
    nv[51].append(lambda: kx(1))
    nv[52] += [lambda: kx(2), lambda: kx(3)]
    for p, op in enumerate(SEQ):
        mat, i, t = op
        if op in LDS_SLOT:
            s = LDS_SLOT[op]; B = vr(Bbuf[s % 2], 8)
            if not NOSTREAM: lg.need(("w", s))
        else: B = opstr(res_reg(op))
        if i >= 2 and (mat, t) == ("q", 0): lg.need(("A", i))
        a(SM(acc[mat] + 4*t, Areg[i], B))
        for f in nv[p]: f()
        for f in va[p]: f()
    stamp(a, 3, timing)
    lg.need(("xw", 1)); a("s_barrier")
    QFR = [28, 32, 40, 48]; KFR = [64, 22, 52, 56]
    def qf(j): lg.issue(f"ds_read_b128 v[{QFR[j]}:{QFR[j]+3}], v{vQKR} offset:{64*j}", ("qf", j))
    def kf(j): lg.issue(f"ds_read_b128 v[{KFR[j]}:{KFR[j]+3}], v{vQKR} offset:{272+64*j}", ("kf", j))
    qf(0); qf(1); qf(2); kx(4); kx(5)
    for i in range(4): a(f"v_cvt_pk_bf16_f32 v{44+i}, v{44+2*i}, v{45+2*i}")
    qf(3); kx(6)
    if not NOEXP: a(f"buffer_store_dwordx4 v[44:47], v{vIW}, {WS}, s{sExpV} offen sc1")
    a(f"s_cmp_eq_u32 s{sStep}, {LAST}\ns_cbranch_scc1 {L('done')}")
    stamp(a, 4, timing)
    X0, X1, XM = 36, 18, 68
    for j in range(4):
        lg.need(("qf", j), ("kx", j)); a(MF(X0, KX[j], QFR[j], j == 0))
        if j == 1: kx(7)
        if j == 2: kf(0)
        if j == 3: kf(1)
    for j in range(4):
        lg.need(("kx", 4+j))
        a(MF(X1, KX[4+j], QFR[j], j == 0))
        if j == 1: kf(2)
        if j == 2: kf(3)
        if j == 3: a(f"v_max3_f32 v26, v{X0}, v{X0+1}, v{X0+2}")
    for j in range(4):
        lg.need(("kf", j)); a(MF(XM, KFR[j], QFR[j], j == 0))
        if j == 0: a(f"buffer_load_dwordx4 v[60:63], v{vIW}, {WS}, s{sKoff} offen sc1\nbuffer_load_dwordx4 v[64:67], v{vIW}, {WS}, s{sKoff} offen offset:1024 sc1")
        if j == 1: a("v_mov_b32 v28, 0x3f803f80")
        if j == 2: a(f"buffer_load_dwordx4 v[52:55], v{vIW}, {WS}, s{sVoff} offen sc1\nv_max3_f32 v26, v26, v{X0+3}, v{X1}")
        if j == 3:
            a(f"""buffer_load_dwordx4 v[56:59], v{vIW}, {WS}, s{sVoff} offen offset:1024 sc1
            v_max3_f32 v26, v26, v{X1+1}, v{X1+2}
            v_max_f32 v26, v26, v{X1+3}""")
    a(f"""v_mov_b32 v29, 0x3f803f80
    v_mov_b32 v30, 0x3f803f80
    v_mov_b32 v31, 0x3f803f80
    v_mov_b32 v32, 0x3f803f80
    v_max3_f32 v26, v26, v{XM}, v{XM+1}
    v_mov_b32 v70, v26
    v_mov_b32 v33, 0
    s_nop 0
    v_permlane16_swap_b32 v26, v70
    v_max_f32 v26, v26, v70
    v_mov_b32 v70, v26
    s_nop 1
    v_permlane32_swap_b32 v26, v70
    v_max_f32 v26, v26, v70
    v_mul_f32 v26, s{sC}, v26""")
    stamp(a, 5, timing)
    SR = [X0, X0+1, X0+2, X0+3, X1, X1+1, X1+2, X1+3, XM, XM+1]
    for r in SR: a(f"v_fma_f32 v{r}, v{r}, s{sC}, -v26")
    for r in SR: a(f"v_exp_f32 v{r}, v{r}")
    a(f"""v_cvt_pk_bf16_f32 v40, v{X0}, v{X0+1}
    v_cvt_pk_bf16_f32 v41, v{X0+2}, v{X0+3}
    v_cvt_pk_bf16_f32 v42, v{X1}, v{X1+1}
    v_cvt_pk_bf16_f32 v43, v{X1+2}, v{X1+3}
    v_cvt_pk_bf16_f32 v34, v{XM}, v{XM+1}
    v_cvt_pk_bf16_f32 v35, v{XM}, v{XM+1}
    v_mfma_f32_16x16x32_bf16 v[48:51], v[28:31], v[40:43], 0
    v_mov_b64 v[68:69], 0
    v_mfma_f32_16x16x32_bf16 v[22:25], v[{vVc}:{vVc+3}], v[40:43], 0
    v_mov_b64 v[70:71], 0
    v_mfma_f32_16x16x16_bf16 v[48:51], v[32:33], v[34:35], v[48:51]
    v_xor_b32 v10, 512, v{vOW}
    v_mfma_f32_16x16x32_bf16 v[36:39], v[{vVc+4}:{vVc+7}], v[40:43], 0
    v_mov_b64 v[32:33], 0
    v_mfma_f32_16x16x16_bf16 v[22:25], v[44:45], v[34:35], v[22:25]
    v_xor_b32 v14, 1024, v{vOW}
    v_mfma_f32_16x16x16_bf16 v[36:39], v[46:47], v[34:35], v[36:39]
    v_rcp_f32 v48, v48
    v_xor_b32 v18, 1536, v{vOW}
    v_mov_b64 v[34:35], 0
    v_mov_b64 v[40:41], 0
    v_mov_b64 v[42:43], 0
    v_pk_mul_f32 v[22:23], v[22:23], v[48:49] op_sel_hi:[1,0]
    v_pk_mul_f32 v[24:25], v[24:25], v[48:49] op_sel_hi:[1,0]
    v_pk_mul_f32 v[36:37], v[36:37], v[48:49] op_sel_hi:[1,0]
    v_pk_mul_f32 v[38:39], v[38:39], v[48:49] op_sel_hi:[1,0]""")
    for r in range(4): a(f"v_cvt_pk_bf16_f32 v{28+r}, v{22+r}, v{36+r}")
    lg.issue(f"ds_write_b128 v{vOW}, v[28:31]", "ow")
    stamp(a, 6, timing)
    PACC = [32, 40, 68, 44]; SACC = 48
    a(SM(PACC[0], 28, opstr(res_reg(("p", 0, 0)))))
    a("v_mov_b64 v[44:45], 0")
    a(SM(PACC[1], 28, opstr(res_reg(("p", 1, 0)))))
    a("v_mov_b64 v[46:47], 0")
    a(SM(PACC[2], 28, opstr(res_reg(("p", 2, 0)))))
    a("v_mov_b64 v[48:49], 0")
    a(SM(PACC[3], 28, opstr(res_reg(("p", 3, 0)))))
    lg.need("ow"); a("s_barrier")
    OFR = [28, 10, 14, 18]; OSR = [22, 36]
    for j in range(1, 4): lg.issue(f"ds_read_b128 v[{OFR[j]}:{OFR[j]+3}], v{OFR[j]}", ("of", j))
    for kk in range(2): lg.issue(f"ds_read_b128 v[{OSR[kk]}:{OSR[kk]+3}], v27 offset:{L_OX+1024*kk}", ("os", kk))
    a("v_mov_b64 v[50:51], 0")
    order = [("p",0,1),("p",0,2),("p",0,3),("s",0,0),("s",0,1),("p",1,1),("p",1,2),("p",1,3),("p",2,1),("p",2,2),("p",2,3),("p",3,1),("p",3,2),("p",3,3)]
    soff = [sHp0, sHp1, sHp2, sHp3]
    def pcvt(p, k): d = PACC[p]; return f"v_cvt_pk_bf16_f32 v{d+k}, v{d+k}, v{d+k+2}"
    def tag(r): return f"v_and_or_b32 v{r}, v{r}, -2, s{sPar}"
    def pst(p): d = PACC[p]; return f"buffer_store_dwordx2 v[{d}:{d+1}], v{vH1}, {WS}, s{soff[p]} offen {sc}"
    fill = {4: [pcvt(0,0)], 5: [pcvt(0,1), tag(PACC[0])], 6: [pst(0), f"v_add_f32 v{SACC}, v{SACC}, v{SACC+2}"], 7: [f"v_add_f32 v{SACC+1}, v{SACC+1}, v{SACC+3}"],
            8: [f"v_cvt_pk_bf16_f32 v{SACC}, v{SACC}, v{SACC+1}", tag(SACC)], 9: [f"buffer_store_dword v{SACC}, v{vH19}, {WS}, s{sHp0} offen {sc}", pcvt(1,0)],
            10: [pcvt(1,1), tag(PACC[1])], 11: [pst(1)], 12: [pcvt(2,0)], 13: [pcvt(2,1), tag(PACC[2]), pst(2)]}
    for k, op in enumerate(order):
        if op[0] == "p":
            lg.need(("of", op[2])); a(SM(PACC[op[1]], OFR[op[2]], opstr(res_reg(op))))
        else:
            lg.need(("os", op[2])); a(SM(SACC, OSR[op[2]], opstr(res_reg(op))))
        for f in fill.get(k, []): a(f)
    a(f"v_and_b32 v26, 0xf0, v{vIW}\nv_add_u32 v26, s{sSelO}, v26")
    a(pcvt(3,0)); a(pcvt(3,1)); a(tag(PACC[3])); a(pst(3))
    stamp(a, 7, timing)
    def house(n):
        a(f"s_waitcnt vmcnt({n})")
        a(f"ds_write_b128 v{vIW}, v[60:63] offset:{L_KEY}\nds_write_b128 v{vIW}, v[64:67] offset:{L_KEY+1024}")
        for r in range(0, 8, 2): a(f"v_mov_b64 v[{vVc+r}:{vVc+r+1}], v[{52+r}:{53+r}]")
    def zero(lo, hi):
        for r in range(lo, hi, 2): a(f"v_mov_b64 v[{r}:{r+1}], 0")
    RD = 28
    def round1():
        for i in range(4): a(f"buffer_load_dwordx4 v[{RD+4*i}:{RD+3+4*i}], v{vIW}, {WS}, s{sRed} offen offset:{i*1024} sc1")
    a(f"s_cmp_eq_u32 s{sUnitOK}, 0\ns_cbranch_scc1 {L('nored')}")
    a(f"ds_read_b128 v[68:71], v26 offset:{L_SEL}")
    delay(a, D1)
    if NFL1 == 2: round1()
    house(5 + 4*(NFL1-1))
    zero(44, 52)
    delay(a, S1)
    a(f"s_mov_b32 s{sSpin}, 0\ns_waitcnt lgkmcnt(0)\ns_lshl_b32 s{sT0}, s{sPar}, 1\ns_or_b32 s{sT0}, s{sT0}, s{sTyB}")
    a(f"s_cmp_eq_u32 s{sT0}, 1\ns_cbranch_scc1 {L('p1B0')}\ns_cmp_eq_u32 s{sT0}, 2\ns_cbranch_scc1 {L('p1A1')}\ns_cmp_eq_u32 s{sT0}, 3\ns_cbranch_scc1 {L('p1B1')}")
    for ty, par in (("A", 0), ("A", 1), ("B", 0), ("B", 1)):
        lab = L(f"p1{ty}{par}")
        a.label(lab)
        round1()
        spin_guard(a)
        for i in range(4):
            d = RD + 4*i
            a(f"s_waitcnt vmcnt({4*(NFL1-1)+3-i})")
            if ty == "A": a(t3(par, 26, d, d, d+2) if i == 0 else t3(par, 26, 26, d, d+2))
            else: a(t3(par, 26, d, d, d+1) if i == 0 else t3(par, 26, 26, d, d+1)); a(t3(par, 26, 26, d+2, d+3))
            a(MF(18, 68, d, i == 0))
        a(tfin(par, 26))
        a(f"s_cbranch_vccnz {lab}")
        stamp(a, 8, timing)
        a(f"""v_add_f32_dpp v18, v18, v18 row_ror:8 row_mask:0xf bank_mask:0xf
        v_add_f32_dpp v19, v19, v19 row_ror:8 row_mask:0xf bank_mask:0xf
        v_cvt_pk_bf16_f32 v18, v18, v19
        {tag(18)}
        buffer_store_dword v18, v{vImgS}, {WS}, s{sImg} offen {sc}
        s_branch {L('post')}""")
    a.label(L("nored"))
    house(5); zero(44, 52)
    stamp(a, 8, timing)
    a.label(L("post"))
    if timing >= 2:
        stamp(a, 9, timing)
        a(f"s_cmp_eq_u32 s{sStep}, 0\ns_cbranch_scc1 {L('step')}\ns_waitcnt lgkmcnt(0)")
        if timing == 2:
            for i in range(1, NST):
                a(f"s_sub_u32 s{sT0}, s{sTim+2*i}, s{sTim+2*(i-1)}\ns_add_u32 s{sTim+20+i}, s{sTim+20+i}, s{sT0}")
        else:
            a(f"s_cmp_lg_u32 s{sStep}, {TSTEP}\ns_cbranch_scc1 {L('step')}")
            for i in range(NST): a(f"s_mov_b32 s{sTim+20+i}, s{sTim+2*i}")
    a(f"s_branch {L('step')}")
    a.label(L("done"))
    a(f"""s_waitcnt vmcnt(0)
    s_barrier
    v_mov_b32 v26, 64
    buffer_store_dword v26, off, {WS}, s{sProg} sc1""")
    if timing:
        a(f"""s_memtime s[{sEX0}:{sEX0+1}]
        s_waitcnt lgkmcnt(0)
        s_sub_u32 s{sT2}, s{sEX0}, s92
        v_mov_b32 v41, s{sT2}
        s_lshl_b32 s{sT0}, s{sH}, 2
        s_add_u32 s{sT0}, s{sT0}, s{sWv}
        s_lshl_b32 s{sT0}, s{sT0}, 6
        s_add_u32 s{sT0}, s{sT0}, {TSDUMP}
        buffer_store_dword v41, off, {WS}, s{sT0} offset:60""")
        if timing >= 2:
            for i in range(0, NST):
                a(f"v_mov_b32 v41, s{sTim+20+i}\nbuffer_store_dword v41, off, {WS}, s{sT0} offset:{4*i}")
        a(f"s_sub_u32 s{sT1}, s92, s94\nv_mov_b32 v41, s{sT1}\nbuffer_store_dword v41, off, {WS}, s{sT0} offset:56")
    a("s_waitcnt vmcnt(0)\ns_endpgm")

def chain_main(a, wait_kv, timing=0, **kw):
    setup(a)
    arm(a)
    a(f"""s_cmp_lg_u32 s{sWv}, 0
    s_cbranch_scc1 L_noarr
    s_lshl_b32 s{sT0}, s{sSlow}, 16
    s_add_u32 s{sT0}, s{sT0}, 1
    v_mov_b32 v16, s{sT0}
    s_mov_b64 exec, 1
    buffer_atomic_add v16, off, {DBG}, 0 offset:{D_ARMED}
    s_mov_b64 exec, -1
    L_noarr:""")
    load_weights(a)
    a(f"s_load_dwordx2 s[{sEX0}:{sEX0+1}], s[0:1], {KA_MEM0}\ns_waitcnt lgkmcnt(0)")
    srd(a, S_W, sEX0, sEX0+1, 8*576*2)
    for it in range(3):
        a(f"""v_add_u32 v17, {256*it}, v71
        v_bfe_u32 v18, v17, 2, 2
        v_and_b32 v19, 1, v17
        v_lshl_add_u32 v18, v18, 1, v19
        v_mul_u32_u24 v18, 1152, v18
        v_lshrrev_b32 v19, 4, v17
        v_bfe_u32 v20, v17, 1, 1
        v_lshl_add_u32 v19, v19, 1, v20
        v_lshl_add_u32 v18, v19, 4, v18
        v_cmp_gt_u32 vcc, 576, v17
        s_and_saveexec_b64 s[{sEX0}:{sEX0+1}], vcc
        s_cbranch_execz L_m0skip{it}
        buffer_load_dwordx4 v[20:23], v18, {SW}, 0 offen
        v_lshlrev_b32 v17, 4, v17
        s_waitcnt vmcnt(0)
        ds_write_b128 v17, v[20:23]
        L_m0skip{it}:
        s_mov_b64 exec, s[{sEX0}:{sEX0+1}]""")
    a(f"""s_mov_b32 s{sSpin}, 0
    L_warm:
    buffer_load_dword v16, off, {DBG}, 0 offset:{D_ARMED} sc1""")
    spin_guard(a)
    a(f"""s_waitcnt vmcnt(0)
    v_readfirstlane_b32 s{sT0}, v16
    s_and_b32 s{sT1}, s{sT0}, 0xffff
    s_cmp_lt_u32 s{sT1}, 32
    s_cbranch_scc1 L_warm
    s_lshr_b32 s{sSlow}, s{sT0}, 16""")
    if wait_kv:
        a(f"""s_mov_b32 s{sSpin}, 0
        v_and_b32 v17, 28, v{vIW4}
        L_wkv:
        buffer_load_dword v16, v17, {DBG}, 0 offen offset:{D_KV} sc1""")
        spin_guard(a)
        a(f"""s_waitcnt vmcnt(0)
        v_cmp_gt_u32 vcc, 28, v16
        s_cbranch_vccnz L_wkv""")
    a(f"""s_lshl_b32 s{sT0}, s{sH}, 13
    s_add_u32 s{sExpK}, s{sT0}, {EXPK - L_QKX - 32*8192}
    s_add_u32 s{sExpV}, s{sT0}, {EXPV - 32*8192}
    s_add_u32 s{sKoff}, s{sT0}, {KF}
    s_add_u32 s{sVoff}, s{sT0}, {VF}
    buffer_load_dwordx4 v[56:59], v{vIW}, {WS}, s{sKoff} offen sc1
    buffer_load_dwordx4 v[60:63], v{vIW}, {WS}, s{sKoff} offen offset:1024 sc1
    buffer_load_dwordx4 v[{vVc}:{vVc+3}], v{vIW}, {WS}, s{sVoff} offen sc1
    buffer_load_dwordx4 v[{vVc+4}:{vVc+7}], v{vIW}, {WS}, s{sVoff} offen offset:1024 sc1
    s_waitcnt vmcnt(0)
    ds_write_b128 v{vIW}, v[56:59] offset:{L_KEY}
    ds_write_b128 v{vIW}, v[60:63] offset:{L_KEY+1024}
    s_mov_b32 s{sStep}, -1
    s_mov_b32 s{sPar}, 0
    s_waitcnt lgkmcnt(0)
    s_barrier
    ds_read_b128 v[18:21], v{vIW}
    ds_read_b128 v[22:25], v{vIW} offset:1024""")
    for r in range(28, 52, 2): a(f"v_mov_b64 v[{r}:{r+1}], 0")
    a("s_waitcnt lgkmcnt(0)")
    if timing: a("s_memtime s[92:93]\ns_waitcnt lgkmcnt(0)")
    if timing >= 2:
        for i in range(NST): a(f"s_mov_b32 s{sTim+20+i}, 0\ns_mov_b32 s{sTim+2*i}, 0")
    a(f"""s_cmp_lg_u32 s{sSlow}, 0
    s_cbranch_scc1 L_have_img_s
    s_branch L_have_img_f""")
    step_body(a, "_f", "", timing, **kw)
    step_body(a, "_s", "sc1", timing, **kw)
    a(f"""L_abort:
    v_mov_b32 v16, 0xdead
    buffer_store_dword v16, off, {DBG}, 0 offset:{D_ERR}
    s_waitcnt vmcnt(0)
    s_endpgm""")

def standalone(force_slow=False, timing=1, **kw):
    a = Asm()
    a("s_memtime s[94:95]")
    a(f"""s_cmp_ge_u32 s2, 256
    s_cbranch_scc1 L_exit
    s_load_dwordx2 s[4:5], s[0:1], {KA_WS}
    s_load_dwordx2 s[6:7], s[0:1], {KA_DBG}
    s_getreg_b32 s3, hwreg(HW_REG_XCC_ID)
    s_and_b32 s3, s3, 15
    s_waitcnt lgkmcnt(0)""")
    srd(a, S_WS, 4, 5, WS_BYTES)
    srd(a, S_DBG, 6, 7, 256)
    if force_slow:
        a(f"""s_cmp_ge_u32 s2, 32
        s_cbranch_scc1 L_exit
        s_mov_b32 s{sH}, s2
        s_mov_b32 s{sSlow}, 1""")
    else:
        a(f"""s_and_b32 s4, s2, 7
        s_cmp_lg_u32 s4, 0
        s_cbranch_scc1 L_exit
        s_lshr_b32 s{sH}, s2, 3
        s_cmp_lg_u32 s3, 0
        s_cselect_b32 s{sSlow}, 1, 0""")
    chain_main(a, wait_kv=False, timing=timing, **kw)
    a("L_exit:\ns_endpgm")
    lines = autopad(a.lines)
    assert check(lines) == 0
    return "; @launch grid=(256,1,1) block=(256,1,1) lds=163840\n" + HEADER + kernel_begin("chain_kernel") + "\n".join(lines) + "\n" + kernel_desc("chain_kernel")

if __name__ == "__main__":
    import sys, json
    cfgs = json.loads(sys.argv[1]) if len(sys.argv) > 1 else {"f": {}}
    for name, kw in cfgs.items():
        kw = dict(kw); slow = kw.pop("slow", False); tm = kw.pop("timing", 1)
        open(f"chain_{name}.s", "w").write(standalone(slow, tm, **kw))
```

```python
from asmlib import *
from layout import *
import struct
def f32(x): return "0x%08x" % struct.unpack("<I", struct.pack("<f", x))[0]
def srd(a, s, lo, hi, nbytes):
    a(f"s_mov_b32 s{s}, s{lo}\ns_and_b32 s{s+1}, s{hi}, 0xffff\ns_mov_b32 s{s+2}, {nbytes}\ns_mov_b32 s{s+3}, 0x20000")
S_WS = 8
S_W = 12
S_DBG = 16
WS = f"s[{S_WS}:{S_WS+3}]"; DBG = f"s[{S_DBG}:{S_DBG+3}]"; SW = f"s[{S_W}:{S_W+3}]"
C_SCALE = (128 ** -0.5) * 1.4426950408889634
HEADER = """.amdgcn_target "amdgcn-amd-amdhsa--gfx950"
.text
"""
def kernel_begin(name):
    return f".globl {name}\n.p2align 8\n.type {name},@function\n{name}:\n"
def kernel_desc(name, vgpr=512, acc=256, sgpr=96):
    return f""".section .rodata,"a"
.p2align 6
.amdhsa_kernel {name}
  .amdhsa_next_free_vgpr {vgpr}
  .amdhsa_next_free_sgpr {sgpr}
  .amdhsa_accum_offset {acc}
  .amdhsa_group_segment_fixed_size 0
  .amdhsa_kernarg_size 120
  .amdhsa_user_sgpr_count 2
  .amdhsa_user_sgpr_kernarg_segment_ptr 1
  .amdhsa_system_sgpr_workgroup_id_x 1
  .amdhsa_float_denorm_mode_32 3
.end_amdhsa_kernel
"""
```

```python
from common import *
(gX, gT, gWv, gM, gC, gR, gTy, gOut, gTyN, gT0, gT1, gT2, gT3, gBuf, gSpin, gSegB) = range(20, 36)
gPA, gPB, gStep = 36, 38, 40
gWq, gWk, gWvp, gWg, gWu = 42, 44, 46, 48, 50
gPhi = 52
gEX = 54
gMV = 56
gNI, gOutN, gBufN, gcKF, gcVF, gcQF, gcHF, gc9216, gc8192 = range(58, 67)
vLane, vRowp, vP16, vP16g, vTrP0, vTrP1, vTrN0, vTrN1, vA0, vA1, vA0h, vA1h, vEQ, vEV, vEH = range(1, 16)
vDm = 16
ACC = 128; WF = 192
CHB = 73728
def xf(tb, ks):
    i = tb*36 + ks
    return f"a[{4*i}:{4*i+3}]" if i < 64 else f"v[{224+4*(i-64)}:{227+4*(i-64)}]"
def spin_guard(a, lim=0x20000):
    a(f"s_add_u32 s{gSpin}, s{gSpin}, 1\ns_cmp_gt_u32 s{gSpin}, {lim}\ns_cbranch_scc1 L_abort")

def decode_next():
    S = [f"s_lshr_b32 s{gT1}, s{gNI}, 6",
         f"s_cmp_eq_u32 s{gT1}, 1",
         f"s_cselect_b32 s{gTyN}, 1, 0",
         f"s_cselect_b64 s[{gPA}:{gPA+1}], s[{gWvp}:{gWvp+1}], s[{gWk}:{gWk+1}]",
         f"s_cselect_b32 s{gT2}, s{gcVF}, s{gcKF}",
         f"s_cselect_b32 s{gT3}, 12, 11",
         f"s_cmp_eq_u32 s{gT1}, 2",
         f"s_cselect_b64 s[{gPA}:{gPA+1}], s[{gWq}:{gWq+1}], s[{gPA}:{gPA+1}]",
         f"s_cselect_b32 s{gT2}, s{gcQF}, s{gT2}",
         f"s_and_b32 s{gT1}, s{gNI}, 63",
         f"s_lshr_b32 s{gOutN}, s{gT1}, 1",
         f"s_lshl_b32 s{gOutN}, s{gOutN}, 13",
         f"s_add_u32 s{gOutN}, s{gOutN}, s{gT2}",
         f"s_and_b32 s{gT2}, s{gNI}, 1",
         f"s_lshl_b32 s{gT2}, s{gT2}, s{gT3}",
         f"s_add_u32 s{gOutN}, s{gOutN}, s{gT2}",
         f"s_lshl_b32 s{gT1}, s{gT1}, 7",
         f"s_sub_u32 s{gT2}, s{gNI}, 192",
         f"s_lshl_b32 s{gT3}, s{gT2}, 11",
         f"s_add_u32 s{gT3}, s{gT3}, s{gcHF}",
         f"s_lshl_b32 s{gT2}, s{gT2}, 6",
         f"s_cmp_ge_u32 s{gNI}, 192",
         f"s_cselect_b32 s{gTyN}, 2, s{gTyN}",
         f"s_cselect_b32 s{gOutN}, s{gT3}, s{gOutN}",
         f"s_cselect_b32 s{gT1}, s{gT2}, s{gT1}",
         f"s_cselect_b64 s[{gPB}:{gPB+1}], s[{gWu}:{gWu+1}], s[{gPA}:{gPA+1}]",
         f"s_cselect_b64 s[{gPA}:{gPA+1}], s[{gWg}:{gWg+1}], s[{gPA}:{gPA+1}]",
         f"s_cselect_b32 s{gT2}, s{gc9216}, s{gc8192}",
         f"s_cselect_b32 s{gT3}, 63, 127",
         f"s_lshl_b32 s{gStep}, s{gT2}, 5",
         f"s_cmp_eq_u32 s{gTyN}, 1",
         f"s_cselect_b64 s[{gMV}:{gMV+1}], -1, 0"]
    V = [f"v_mul_u32_u24 v18, s{gT2}, v{vRowp}",
         f"v_and_b32 v19, s{gT3}, v{vP16}",
         f"v_add3_u32 v18, v18, v19, s{gT1}",
         f"v_mov_b32 v19, s{gPA}",
         f"v_mov_b32 v20, s{gPB}",
         f"v_cndmask_b32 v16, v19, v20, s[{gPhi}:{gPhi+1}]",
         f"v_mov_b32 v19, s{gPA+1}",
         f"v_mov_b32 v20, s{gPB+1}",
         f"v_cndmask_b32 v17, v19, v20, s[{gPhi}:{gPhi+1}]",
         f"v_add_co_u32 v16, vcc, v16, v18",
         f"v_cndmask_b32 v21, v{vTrP0}, v{vTrN0}, s[{gMV}:{gMV+1}]",
         f"v_add_u32 v21, s{gBufN}, v21",
         f"v_addc_co_u32 v17, vcc, 0, v17, vcc"]
    return S, V
def set_tr(a):
    a(f"""v_mov_b32 v{vA0}, v21
    v_xor_b32 v{vA1}, 64, v21
    v_add_u32 v{vA0h}, 0x10000, v21
    v_add_u32 v{vA1h}, 0x10000, v{vA1}""")

def dma_one(a):
    a(f"""global_load_lds_dwordx4 v[16:17], off
    s_add_u32 m0, m0, 4096
    v_lshl_add_u64 v[16:17], v[16:17], 0, s[{gStep}:{gStep+1}]""")

def body(a, isV, NODMA=False):
    lg = Cnt(a, "lgkmcnt", 15)
    S, V = decode_next()
    S = [f"s_add_u32 s{gNI}, s{gNI}, 28", f"s_cmp_eq_u32 s{gR}, 11", f"s_cselect_b32 s{gNI}, s{gC}, s{gNI}",
         f"s_sub_u32 s{gBufN}, {CHB}, s{gBufN}", f"s_lshl_b32 s{gT0}, s{gWv}, 10", f"s_add_u32 s{gT0}, s{gT0}, s{gBufN}", f"s_mov_b32 m0, s{gT0}"] + S
    fill = [[x] for x in S] + [[x] for x in V]
    gaps = {}
    g = 0
    for k in range(0, len(S), 3): gaps[g] = S[k:k+3]; g += 1
    for k in range(0, len(V), 2): gaps[g] = V[k:k+2]; g += 1
    dma0 = (g + 3) // 4
    def rd(ks, k):
        ct, e = k // 2, k % 2
        base = (vA0, vA1)[ct] if ks < 32 else (vA0h, vA1h)[ct]
        off = (ks % 32)*2048 + e*512
        r = WF + (ks % 3)*8 + ct*4 + e*2
        lg.issue(f"ds_read_b64_tr_b16 v[{r}:{r+1}], v{base} offset:{off}", (ks, k))
    for ks in range(2):
        for k in range(4): rd(ks, k)
    for ks in range(36):
        for k in range(4):
            ct, tb = k // 2, k % 2
            if k % 2 == 0: lg.need((ks, 2*ct+1))
            d = ACC + 16*(2*ct + tb); w = WF + (ks % 3)*8 + ct*4
            W = f"v[{w}:{w+3}]"; C = "0" if ks == 0 else f"v[{d}:{d+15}]"
            if isV: a(f"v_mfma_f32_32x32x16_bf16 v[{d}:{d+15}], {xf(tb, ks)}, {W}, {C}")
            else: a(f"v_mfma_f32_32x32x16_bf16 v[{d}:{d+15}], {W}, {xf(tb, ks)}, {C}")
            if ks + 2 < 36: rd(ks + 2, k)
            for x in gaps.get(4*ks + k, []): a(x)
            if k == 1 and dma0 <= ks < dma0 + 18 and not NODMA: dma_one(a)

def epilogue(a0, ty, NOST=False, STF='sc1'):
    T = 64
    a = lambda s: (a0(s.replace('sc1', STF)) if not (NOST and s.startswith('buffer_store')) else None)
    if ty == 2:
        for tb in range(2):
            g = ACC + 16*tb; u = ACC + 32 + 16*tb
            for r in range(16): a(f"v_mul_f32 v{g+r}, v{g+r}, v{u+r}")
            for r in range(8): a(f"v_cvt_pk_bf16_f32 v{T+8*tb+r}, v{g+2*r}, v{g+2*r+1}")
            if tb == 1: a(f"s_add_u32 s{gOut}, s{gOut}, {288*1024}")
            for qq in range(2): a(f"buffer_store_dwordx4 v[{T+8*tb+4*qq}:{T+8*tb+4*qq+3}], v{vEH}, {WS}, s{gOut} offen offset:{qq*1024} sc1")
        return 4
    for tb in range(2):
        if tb == 1: a(f"s_add_u32 s{gOut}, s{gOut}, {32*8192}")
        for ct in range(2):
            d = ACC + 16*(2*ct + tb); t = T + 8*(2*tb + ct)
            for qq in range(2):
                src = [8*qq + 2*i for i in range(4)] if ty == 0 else [4*qq, 4*qq+2, 8+4*qq, 8+4*qq+2]
                for i in range(4): a(f"v_cvt_pk_bf16_f32 v{t+4*qq+i}, v{d+src[i]}, v{d+src[i]+1}")
                off = ct*1024 + qq*512 if ty == 0 else ct*2048 + qq*512
                a(f"buffer_store_dwordx4 v[{t+4*qq}:{t+4*qq+3}], v{vEQ if ty == 0 else vEV}, {WS}, s{gOut} offen offset:{off} sc1")
    return 8

def arrive(a, off, lab):
    a(f"""s_cmp_lg_u32 s{gWv}, 0
    s_cbranch_scc1 {lab}
    s_lshl_b32 s{gT0}, s{gM}, 2
    v_mov_b32 v18, 1
    s_mov_b64 exec, 1
    buffer_atomic_add v18, off, {DBG}, s{gT0} offset:{off}
    s_mov_b64 exec, -1
    {lab}:""")

def gemm1(a, timing=0, NOST=False, NODMA=False, STF='sc1'):
    a(f"""v_lshrrev_b32 v18, 6, v0
    v_and_b32 v{vLane}, 63, v0
    v_readfirstlane_b32 s{gWv}, v18
    s_load_dwordx2 s[{gWq}:{gWq+1}], s[0:1], {KA_WQ}
    s_load_dwordx2 s[{gWk}:{gWk+1}], s[0:1], {KA_WK}
    s_load_dwordx2 s[{gWvp}:{gWvp+1}], s[0:1], {KA_WV}
    s_load_dwordx2 s[{gWg}:{gWg+1}], s[0:1], {KA_WG}
    s_load_dwordx2 s[{gWu}:{gWu+1}], s[0:1], {KA_WU}
    s_load_dwordx2 s[{gEX}:{gEX+1}], s[0:1], {KA_X}
    s_lshr_b32 s{gM}, s{gT}, 2
    s_and_b32 s{gC}, s{gT}, 3
    s_lshl_b32 s{gT0}, s{gX}, 2
    s_add_u32 s{gC}, s{gC}, s{gT0}
    s_mov_b32 s{gStep+1}, 0
    s_lshl_b32 s{gSegB}, s{gM}, 3
    s_lshl_b32 s{gT0}, s{gWv}, 1
    s_add_u32 s{gSegB}, s{gSegB}, s{gT0}
    v_lshrrev_b32 v18, 3, v{vLane}                ; r
    v_and_b32 v19, 7, v{vLane}
    v_bfe_u32 v20, v18, 1, 1
    v_lshlrev_b32 v20, 2, v20
    v_xor_b32 v19, v19, v20                       ; p
    v_lshlrev_b32 v{vP16}, 4, v19
    v_and_b32 v{vP16g}, 63, v{vP16}
    v_cmp_le_u32 s[{gPhi}:{gPhi+1}], 4, v19
    s_lshl_b32 s{gT0}, s{gWv}, 3
    v_add_u32 v{vRowp}, s{gT0}, v18
    s_waitcnt lgkmcnt(0)""")
    srd(a, S_W, gEX, gEX+1, 2048*576*2)
    a(f"""v_and_b32 v18, 31, v{vLane}
    v_lshrrev_b32 v19, 5, v{vLane}                ; hi
    s_lshl_b32 s{gT1}, s{gSegB}, 18
    s_add_u32 s{gcKF}, s{gT1}, {KF}
    s_add_u32 s{gcVF}, s{gT1}, {VF}
    s_add_u32 s{gcQF}, s{gT1}, {QF}
    s_mul_i32 s{gT1}, s{gSegB}, {288*1024}
    s_add_u32 s{gcHF}, s{gT1}, {HF}
    s_mov_b32 s{gc9216}, 9216
    s_mov_b32 s{gc8192}, 8192""")
    a(f"""v_lshrrev_b32 v21, 4, v18
    v_lshlrev_b32 v21, 12, v21
    v_lshl_add_u32 v21, v19, 8, v21
    v_and_b32 v22, 15, v18
    v_lshl_add_u32 v{vEQ}, v22, 4, v21
    v_and_b32 v21, 1, v18
    v_lshlrev_b32 v21, 10, v21
    v_lshl_add_u32 v21, v19, 8, v21
    v_lshrrev_b32 v22, 1, v18
    v_lshl_add_u32 v{vEV}, v22, 4, v21
    v_lshlrev_b32 v{vEH}, 4, v{vLane}
    ; tr: row part (8hi + r)*128, r = (l%16)/4 ; cq = 4*((l/16)%2) + l%4
    v_bfe_u32 v21, v{vLane}, 2, 2                 ; r
    v_lshl_add_u32 v22, v19, 3, v21
    v_lshlrev_b32 v22, 7, v22                     ; row*128
    v_bfe_u32 v21, v21, 1, 1
    v_lshlrev_b32 v21, 6, v21                     ; sw*64
    v_add_u32 v22, v22, v21
    v_bfe_u32 v23, v{vLane}, 4, 1
    v_and_b32 v24, 3, v{vLane}
    v_lshl_add_u32 v23, v23, 2, v24               ; cq
    v_lshl_add_u32 v{vTrN0}, v23, 3, v22
    v_xor_b32 v{vTrN1}, 64, v{vTrN0}
    ; pi(cq) = 4*(q/2) + 2*hi' + q%2 , q = cq/2, hi' = cq%2
    v_and_b32 v24, 4, v23
    v_and_b32 v25, 1, v23
    v_lshl_add_u32 v24, v25, 1, v24
    v_bfe_u32 v25, v23, 1, 1
    v_add_u32 v24, v24, v25
    v_lshl_add_u32 v{vTrP0}, v24, 3, v22
    v_xor_b32 v{vTrP1}, 64, v{vTrP0}""")
    for i in range(10):
        a(f"""v_add_u32 v24, {64*i}, v{vLane}
        v_mul_u32_u24 v25, 3450, v24
        v_lshrrev_b32 v25, 16, v25
        v_mul_u32_u24 v26, 19, v25
        v_sub_u32 v24, v24, v26
        v_min_u32 v24, 17, v24
        v_min_u32 v25, 31, v25
        v_mul_u32_u24 v25, 1152, v25
        v_lshl_add_u32 v{32+i}, v24, 4, v25""")
    a(f"""s_mul_i32 s{gT3}, s{gWv}, 20480
    s_add_u32 s{gT3}, s{gT3}, {CHB}
    v_mul_u32_u24 v24, 19, v18
    v_add_u32 v24, v24, v19
    v_lshlrev_b32 v24, 4, v24
    v_add_u32 v42, s{gT3}, v24
    s_mul_i32 s{gR}, s{gSegB}, {32*1152}""")
    def xpass(p):
        tb, kq = p // 4, p % 4
        a(f"s_add_u32 s{gTy}, s{gR}, {tb*32*1152 + kq*288}\ns_add_u32 m0, s{gOut}, {(p % 2)*10240}")
        for i in range(10):
            a(f"buffer_load_dwordx4 v{32+i}, {SW}, s{gTy} offen lds")
            if i < 9: a("s_add_u32 m0, m0, 1024")
    a(f"s_mov_b32 s{gOut}, s{gT3}")
    xpass(0); xpass(1)
    a(f"s_mov_b32 s{gNI}, s{gC}\ns_mov_b32 s{gBufN}, 0")
    S, V = decode_next()
    for x in S + V: a(x)
    a(f"s_lshl_b32 s{gT0}, s{gWv}, 10\ns_mov_b32 m0, s{gT0}\ns_nop 0")
    for i in range(18): dma_one(a)
    for p in range(8):
        tb, kq = p // 4, p % 4
        n = 28 if p == 0 else (28 if p == 1 else (10 if p < 7 else 0))
        a(f"s_waitcnt vmcnt({n})")
        for k in range(9): a(f"ds_read_b128 {xf(tb, 9*kq + k)}, v42 offset:{(p % 2)*10240 + 32*k}")
        if p + 2 < 8:
            a("s_waitcnt lgkmcnt(0)"); xpass(p + 2)
    a(f"""s_cmp_lg_u32 s{gC}, 0
    s_cbranch_scc1 L_noz
    v_mov_b32 v24, 0
    v_and_b32 v22, 7, v{vLane}
    v_lshlrev_b32 v22, 7, v22
    s_lshl_b32 s{gT0}, s{gM}, 10
    s_add_u32 s{gT0}, s{gT0}, {OCNT}
    buffer_store_dword v24, v22, {WS}, s{gT0} offen sc1
    L_noz:
    s_mov_b32 s{gR}, 0
    s_waitcnt lgkmcnt(0)
    s_barrier""")
    if timing: a("s_memtime s[70:71]\ns_mov_b32 s80, 0\ns_mov_b32 s81, 0\ns_mov_b32 s82, 0\ns_mov_b32 s83, 0")
    a.label("L_g1loop")
    if timing: a("s_memtime s[72:73]")
    set_tr(a)
    a(f"""s_mov_b32 s{gTy}, s{gTyN}
    s_mov_b32 s{gOut}, s{gOutN}
    s_cmp_eq_u32 s{gTy}, 1
    s_cbranch_scc1 L_bodyV""")
    if timing: a("s_memtime s[74:75]")
    body(a, False, NODMA)
    if timing: a("s_memtime s[76:77]")
    a(f"s_cmp_eq_u32 s{gTy}, 2\ns_cbranch_scc1 L_epiG\ns_nop 7")
    n = epilogue(a, 0, NOST, STF); a(f"s_waitcnt vmcnt({n})\ns_branch L_epid")
    a.label("L_epiG"); a("s_nop 7")
    n = epilogue(a, 2, NOST, STF); a(f"s_waitcnt vmcnt({n})\ns_branch L_epid")
    a.label("L_bodyV")
    if timing: a("s_memtime s[74:75]")
    body(a, True, NODMA)
    if timing: a("s_memtime s[76:77]")
    n = epilogue(a, 1, NOST, STF); a(f"s_waitcnt vmcnt({n})")
    a.label("L_epid")
    if timing: a("s_memtime s[78:79]")
    a(f"""s_cmp_lg_u32 s{gR}, 4
    s_cbranch_scc1 L_nokv
    s_waitcnt vmcnt(0)
    s_barrier""")
    arrive(a, D_KV, "L_arr1")
    a(f"""s_branch L_kvd
    L_nokv:
    s_barrier
    L_kvd:""")
    if timing: a("""s_memtime s[84:85]
    s_waitcnt lgkmcnt(0)
    s_sub_u32 s86, s74, s72
    s_add_u32 s80, s80, s86
    s_sub_u32 s86, s76, s74
    s_add_u32 s81, s81, s86
    s_sub_u32 s86, s78, s76
    s_add_u32 s82, s82, s86
    s_sub_u32 s86, s84, s78
    s_add_u32 s83, s83, s86""")
    a(f"""    s_add_u32 s{gR}, s{gR}, 1
    s_cmp_lt_u32 s{gR}, 12
    s_cbranch_scc1 L_g1loop""")
    a(f"""s_cmp_lg_u32 s{gC}, 0
    s_cbranch_scc1 L_nogate
    s_load_dwordx2 s[{gEX}:{gEX+1}], s[0:1], {KA_GATE}
    s_waitcnt lgkmcnt(0)""")
    srd(a, S_W, gEX, gEX+1, 576*2)
    a(f"v_lshrrev_b32 v18, 5, v{vLane}\nv_lshlrev_b32 v18, 4, v18")
    for b in range(3):
        for k in range(12): a(f"buffer_load_dwordx4 v[{64+4*k}:{67+4*k}], v18, {SW}, 0 offen offset:{32*(12*b+k)}")
        a("s_waitcnt vmcnt(0)")
        for k in range(12):
            ks = 12*b + k
            for tb in range(2):
                d = ACC + 16*tb
                a(f"v_mfma_f32_32x32x16_bf16 v[{d}:{d+15}], v[{64+4*k}:{67+4*k}], {xf(tb, ks)}, " + ("0" if ks == 0 else f"v[{d}:{d+15}]"))
    a(f"""v_and_b32 v18, 31, v{vLane}
    v_lshlrev_b32 v18, 2, v18
    s_lshl_b32 s{gT0}, s{gSegB}, 7
    s_add_u32 s{gT0}, s{gT0}, {GBUF}
    s_mov_b32 s{gT1}, {f32(-1.4426950408889634)}""")
    for tb in range(2):
        d = ACC + 16*tb
        a(f"""v_mul_f32 v{d}, s{gT1}, v{d}
        v_exp_f32 v{d}, v{d}
        v_add_f32 v{d}, 1.0, v{d}
        v_rcp_f32 v{d}, v{d}
        buffer_store_dword v{d}, v18, {WS}, s{gT0} offen offset:{128*tb} sc1""")
    a("L_nogate:\ns_waitcnt vmcnt(0)\ns_barrier")
    arrive(a, D_G1, "L_arr2")

def standalone(**kw):
    a = Asm()
    a(f"""s_memtime s[94:95]
    s_cmp_ge_u32 s2, 256
    s_cbranch_scc1 L_exit
    s_load_dwordx2 s[4:5], s[0:1], {KA_WS}
    s_load_dwordx2 s[6:7], s[0:1], {KA_DBG}
    s_waitcnt lgkmcnt(0)""")
    srd(a, S_WS, 4, 5, WS_BYTES); srd(a, S_DBG, 6, 7, 256)
    a(f"""s_and_b32 s{gX}, s2, 7
    s_cmp_eq_u32 s{gX}, 0
    s_cbranch_scc1 L_exit
    s_sub_u32 s{gX}, s{gX}, 1
    s_lshr_b32 s{gT}, s2, 3""")
    gemm1(a, timing=1, **kw)
    a(f"""s_memtime s[92:93]
    s_waitcnt lgkmcnt(0)
    s_sub_u32 s92, s92, s94
    v_mov_b32 v18, s92
    s_lshl_b32 s{gT0}, s2, 5
    s_add_u32 s{gT0}, s{gT0}, 0x170000
    buffer_store_dword v18, off, {WS}, s{gT0}
    s_sub_u32 s70, s70, s94
    v_mov_b32 v18, s70
    buffer_store_dword v18, off, {WS}, s{gT0} offset:4
    v_mov_b32 v18, s80
    buffer_store_dword v18, off, {WS}, s{gT0} offset:8
    v_mov_b32 v18, s81
    buffer_store_dword v18, off, {WS}, s{gT0} offset:12
    v_mov_b32 v18, s82
    buffer_store_dword v18, off, {WS}, s{gT0} offset:16
    v_mov_b32 v18, s83
    buffer_store_dword v18, off, {WS}, s{gT0} offset:20
    s_waitcnt vmcnt(0)
    L_abort:
    L_exit:
    s_endpgm""")
    lines = autopad(a.lines)
    assert check(lines) == 0
    return "; @launch grid=(256,1,1) block=(256,1,1) lds=163840\n" + HEADER + kernel_begin("g1_kernel") + "\n".join(lines) + "\n" + kernel_desc("g1_kernel")
if __name__ == "__main__":
    open("g1.s", "w").write(standalone())
    open("g1_a.s", "w").write(standalone(NOST=True))
    open("g1_b.s", "w").write(standalone(NODMA=True))
    open("g1_c.s", "w").write(standalone(NODMA=True, NOST=True))
    open("g1_d.s", "w").write(standalone(STF=''))
```

```python
H1 = 0x40000
H1S = 72*4096
IMG = 0x140000
IMGS = 0x4000
PROG = 0x150000
OCNT = 0x152000
GBUF = 0x160000
EXPK = 0x1000000
EXPV = 0x8000000
QF = 0x2000000
KF = 0x3000000
VF = 0x4000000
OF = 0x5000000
HF = 0x6000000
WS_BYTES = 268435456
OOB = 0x70000000
KA_X, KA_MEM0, KA_WQ, KA_WK, KA_WV, KA_WO, KA_SEG, KA_BX, KA_WG, KA_WU, KA_WD, KA_GATE, KA_OUT, KA_DBG, KA_WS = [8*i for i in range(15)]
D_TICK = 0
D_OVF = 32
D_OVF2 = 44
D_ARMED = 36
D_ERR = 40
D_KV = 64
D_G1 = 96
D_TIME = 128
```

```python
from common import *
from gemm1 import gX, gT, gWv, gT0, gT1, gT2, gT3, gSpin, gEX, vLane, spin_guard
pU, pSeg, pHead, pBase, pI, pC, pRed, pOut = range(60, 68)
pMask = 68
S_OUT = 76

def poll_ge(a, lab, srdname, soff, imm, val, sleep=2):
    a(f"""s_mov_b32 s{gSpin}, 0
    {lab}:
    buffer_load_dword v20, off, {srdname}, {soff} offset:{imm} sc1""")
    spin_guard(a)
    a(f"""s_waitcnt vmcnt(0)
    v_readfirstlane_b32 s{gT3}, v20
    s_and_b32 s{gT3}, s{gT3}, 0xffff
    s_cmp_ge_u32 s{gT3}, {val}
    s_cbranch_scc1 {lab}_ok
    s_sleep {sleep}
    s_branch {lab}
    {lab}_ok:""")

def MF(d, A, B, C): return f"v_mfma_f32_16x16x32_bf16 v[{d}:{d+3}], v[{A}:{A+3}], v[{B}:{B+3}], " + ("0" if C is None else f"v[{C}:{C+3}]")

def attn(a):
    Q, K, V, KM, VM = 32, 64, 96, 128, 144
    X0, X1, XM, P, PM, O, Lr, ONE, ONZ, OUT = 160, 164, 168, 172, 176, 180, 212, 216, 220, 224
    vL16, vKM, vO, vNinf = 2, 3, 4, 5
    a(f"""s_sub_u32 s{pU}, s{gT}, 18
    s_mul_i32 s{gT0}, s{gX}, 14
    s_add_u32 s{pU}, s{pU}, s{gT0}
    s_lshl_b32 s{pU}, s{pU}, 2
    s_add_u32 s{pU}, s{pU}, s{gWv}
    v_lshlrev_b32 v{vL16}, 4, v{vLane}
    v_and_b32 v20, 15, v{vLane}                  ; n
    v_lshrrev_b32 v21, 4, v{vLane}               ; g
    v_lshrrev_b32 v22, 2, v20
    v_and_b32 v23, 1, v20
    v_lshl_add_u32 v22, v22, 1, v23              ; rho
    v_mul_u32_u24 v22, 544, v22
    v_lshl_add_u32 v{vKM}, v21, 4, v22
    v_lshlrev_b32 v22, 9, v21                    ; (g/2)*1024 + (g%2)*512
    v_lshl_add_u32 v{vO}, v20, 4, v22
    v_mov_b32 v{vNinf}, 0xff800000
    v_lshlrev_b32 v22, 2, v21
    s_mov_b32 s{pC}, {f32(C_SCALE)}""")
    for r in range(4): a(f"v_add_u32 v23, {r}, v22\nv_cmp_le_u32 s[{pMask+2*r}:{pMask+2*r+1}], v23, v20")
    for r in range(4): a(f"v_mov_b32 v{ONE+r}, 0x3f803f80")
    a(f"v_mov_b32 v{ONZ}, 0x3f803f80\nv_mov_b32 v{ONZ+1}, 0")
    poll_ge(a, "L_at_arm", DBG, "0", D_ARMED, 32)
    a.label("L_at_loop")
    a(f"""s_lshr_b32 s{pSeg}, s{pU}, 5
    s_and_b32 s{pHead}, s{pU}, 31
    s_lshr_b32 s{gT0}, s{pSeg}, 3
    s_lshl_b32 s{gT0}, s{gT0}, 2""")
    poll_ge(a, "L_at_g1", DBG, f"s{gT0}", D_G1, 28, 8)
    a(f"s_lshl_b32 s{pBase}, s{pU}, 13")
    for reg, base in ((Q, QF), (K, KF), (V, VF)):
        for hh in range(2):
            a(f"s_add_u32 s{gT0}, s{pBase}, {base + 4096*hh}")
            for i in range(4): a(f"buffer_load_dwordx4 v[{reg+16*hh+4*i}:{reg+16*hh+4*i+3}], v{vL16}, {WS}, s{gT0} offen offset:{1024*i} sc1")
    a(f"""s_lshl_b32 s{gT0}, s{pHead}, 7
    s_add_u32 s{gT0}, s{gT0}, {PROG}
    s_add_u32 s{gT1}, s{pSeg}, 1""")
    poll_ge(a, "L_at_pr", WS, f"s{gT0}", 0, f"s{gT1}", 4)
    a(f"s_add_u32 s{gT0}, s{pBase}, {EXPK}")
    for j in range(4): a(f"buffer_load_dwordx4 v[{KM+4*j}:{KM+4*j+3}], v{vKM}, {WS}, s{gT0} offen offset:{64*j} sc1")
    for hh in range(2):
        a(f"s_add_u32 s{gT0}, s{pBase}, {EXPV + 4096*hh}")
        for i in range(2): a(f"buffer_load_dwordx4 v[{VM+8*hh+4*i}:{VM+8*hh+4*i+3}], v{vL16}, {WS}, s{gT0} offen offset:{2048*i} sc1")
    a(f"""s_lshl_b32 s{gT0}, s{pSeg}, 18
    s_lshl_b32 s{gT1}, s{pHead}, 13
    s_add_u32 s{pOut}, s{gT0}, s{gT1}
    s_add_u32 s{pOut}, s{pOut}, {OF}
    s_add_u32 s{gT2}, s{pOut}, 4096""")
    for qt in range(2):
        for j in range(4): a(MF(X0, K + 4*j, Q + 16*qt + 4*j, None if j == 0 else X0))
        if qt == 1:
            for j in range(4): a(MF(X1, K + 16 + 4*j, Q + 16 + 4*j, None if j == 0 else X1))
        if qt == 0: a("s_waitcnt vmcnt(0)")
        for j in range(4): a(MF(XM, KM + 4*j, Q + 16*qt + 4*j, None if j == 0 else XM))
        D = X0 if qt == 0 else X1
        for r in range(4): a(f"v_cndmask_b32 v{D+r}, v{vNinf}, v{D+r}, s[{pMask+2*r}:{pMask+2*r+1}]")
        a(f"v_max3_f32 v20, v{X0}, v{X0+1}, v{X0+2}")
        if qt == 1: a(f"v_max3_f32 v20, v20, v{X1}, v{X1+1}\nv_max3_f32 v20, v20, v{X1+2}, v{X1+3}")
        a(f"""v_max_f32 v20, v20, v{X0+3}
        v_max3_f32 v20, v20, v{XM}, v{XM+1}
        v_mov_b32 v21, v20
        v_permlane16_swap_b32 v20, v21
        v_max_f32 v20, v20, v21
        v_mov_b32 v21, v20
        v_permlane32_swap_b32 v20, v21
        v_max_f32 v20, v20, v21
        v_mul_f32 v20, s{pC}, v20""")
        SR = [X0+r for r in range(4)] + ([X1+r for r in range(4)] if qt == 1 else []) + [XM, XM+1]
        for r in SR: a(f"v_fma_f32 v{r}, v{r}, s{pC}, -v20")
        for r in SR: a(f"v_exp_f32 v{r}, v{r}")
        a(f"v_cvt_pk_bf16_f32 v{P}, v{X0}, v{X0+1}\nv_cvt_pk_bf16_f32 v{P+1}, v{X0+2}, v{X0+3}")
        if qt == 1: a(f"v_cvt_pk_bf16_f32 v{P+2}, v{X1}, v{X1+1}\nv_cvt_pk_bf16_f32 v{P+3}, v{X1+2}, v{X1+3}")
        else: a(f"v_mov_b32 v{P+2}, 0\nv_mov_b32 v{P+3}, 0")
        a(f"v_cvt_pk_bf16_f32 v{PM}, v{XM}, v{XM+1}\nv_cvt_pk_bf16_f32 v{PM+1}, v{XM}, v{XM+1}")
        a(MF(Lr, ONE, P, None))
        for dt in range(8): a(MF(O + 4*dt, V + 4*dt, P, None))
        a(f"v_mfma_f32_16x16x16_bf16 v[{Lr}:{Lr+3}], v[{ONZ}:{ONZ+1}], v[{PM}:{PM+1}], v[{Lr}:{Lr+3}]")
        for dt in range(8): a(f"v_mfma_f32_16x16x16_bf16 v[{O+4*dt}:{O+4*dt+3}], v[{VM+2*dt}:{VM+2*dt+1}], v[{PM}:{PM+1}], v[{O+4*dt}:{O+4*dt+3}]")
        a(f"v_rcp_f32 v{Lr}, v{Lr}")
        for wp in range(4):
            for r in range(8): a(f"v_mul_f32 v{O+8*wp+r}, v{O+8*wp+r}, v{Lr}")
            for r in range(4): a(f"v_cvt_pk_bf16_f32 v{OUT+4*wp+r}, v{O+8*wp+r}, v{O+8*wp+4+r}")
            a(f"buffer_store_dwordx4 v[{OUT+4*wp}:{OUT+4*wp+3}], v{vO}, {WS}, s{pOut if wp < 2 else gT2} offen offset:{(wp % 2)*2048 + qt*256} sc1")
    a(f"""s_lshl_b32 s{gT0}, s{pSeg}, 7
    s_add_u32 s{gT0}, s{gT0}, {OCNT}
    v_mov_b32 v20, 1
    s_waitcnt vmcnt(0)
    s_mov_b64 exec, 1
    buffer_atomic_add v20, off, {WS}, s{gT0}
    s_mov_b64 exec, -1
    s_add_u32 s{pU}, s{pU}, 392
    s_cmp_lt_u32 s{pU}, 2048
    s_cbranch_scc1 L_at_loop
    s_waitcnt vmcnt(0)
    s_endpgm""")

BST = 98304
def wfr(F): return f"a[{4*F}:{4*F+3}]" if F < 64 else f"v[{224+4*(F-64)}:{227+4*(F-64)}]"
def wfr2(F, e): return f"a[{4*F+2*e}:{4*F+2*e+1}]" if F < 64 else f"v[{224+4*(F-64)+2*e}:{225+4*(F-64)+2*e}]"
vDo, vTr, vL16, vRW, vRR, vG, vOo = 2, 3, 4, 5, 6, 7, 8

def loadW(a, ka, nfr):
    a(f"s_load_dwordx2 s[{gEX}:{gEX+1}], s[0:1], {ka}\ns_waitcnt lgkmcnt(0)")
    srd(a, S_W, gEX, gEX+1, nfr*64*1152)
    a(f"""s_mul_i32 s{gT0}, s{gWv}, {nfr*16*1152}
    s_lshl_b32 s{gT1}, s{gT}, 6
    s_add_u32 s{gT0}, s{gT0}, s{gT1}
    s_mul_i32 s{gT1}, s{gWv}, 24576""")
    for f0 in range(0, nfr, 24):
        n = min(24, nfr - f0)
        a(f"s_mov_b32 m0, s{gT1}")
        for i in range(n):
            a(f"buffer_load_dwordx4 v{vDo}, {SW}, s{gT0} offen lds\ns_add_u32 m0, m0, 1024\ns_add_u32 s{gT0}, s{gT0}, {16*1152}")
        a("s_waitcnt vmcnt(0)")
        for i in range(n):
            for e in range(2): a(f"ds_read_b64_tr_b16 {wfr2(f0+i, e)}, v{vTr} offset:{1024*i + 256*e}")
        a("s_waitcnt lgkmcnt(0)")

def job(a, nfr):
    RING = 16; ACCp = 128
    def ld(k):
        if k % 4 == 0 and k > 0: a(f"s_add_u32 s{pBase}, s{pBase}, 4096")
        r = 64 + 4*(k % RING)
        a(f"buffer_load_dwordx4 v[{r}:{r+3}], v{vL16}, {WS}, s{pBase} offen offset:{1024*(k % 4)} sc1")
    for k in range(RING): ld(k)
    for k in range(nfr):
        r = 64 + 4*(k % RING)
        a(f"s_waitcnt vmcnt({min(RING, nfr - k) - 1})")
        a(f"v_mfma_f32_32x32x16_bf16 v[{ACCp}:{ACCp+15}], {wfr(k)}, v[{r}:{r+3}], " + ("0" if k == 0 else f"v[{ACCp}:{ACCp+15}]"))
        if k + RING < nfr: ld(k + RING)
    a(f"v_add_u32 v20, s{pRed}, v{vRW}\nv_add_u32 v21, s{pRed}, v{vRR}")
    for q in range(4): a(f"ds_write_b128 v20, v[{ACCp+4*q}:{ACCp+4*q+3}] offset:{1024*q}")
    a("s_waitcnt lgkmcnt(0)\ns_barrier")
    for wp in range(4): a(f"ds_read_b128 v[{144+4*wp}:{147+4*wp}], v21 offset:{4096*wp}")
    a(f"s_xor_b32 s{pRed}, s{pRed}, 16384\ns_waitcnt lgkmcnt(0)")
    for r in range(4): a(f"v_add_f32 v{144+r}, v{144+r}, v{148+r}\nv_add_f32 v{152+r}, v{152+r}, v{156+r}")
    for r in range(4): a(f"v_add_f32 v{144+r}, v{144+r}, v{152+r}")

def proj(a):
    OUTS = f"s[{S_OUT}:{S_OUT+3}]"
    a(f"""s_load_dwordx2 s[{gEX}:{gEX+1}], s[0:1], {KA_OUT}
    v_lshrrev_b32 v20, 2, v{vLane}
    v_mul_u32_u24 v20, 1152, v20
    v_and_b32 v21, 3, v{vLane}
    v_lshl_add_u32 v{vDo}, v21, 4, v20
    v_lshlrev_b32 v{vL16}, 4, v{vLane}
    v_lshrrev_b32 v22, 5, v{vLane}                ; hi
    v_bfe_u32 v23, v{vLane}, 2, 2                 ; r
    v_lshl_add_u32 v23, v22, 3, v23
    v_lshlrev_b32 v23, 6, v23                     ; row*64
    v_bfe_u32 v24, v{vLane}, 4, 1
    v_lshlrev_b32 v24, 2, v24                     ; 4*(q/2)
    v_and_b32 v25, 1, v{vLane}
    v_lshl_add_u32 v24, v25, 1, v24
    v_bfe_u32 v25, v{vLane}, 1, 1
    v_add_u32 v24, v24, v25                       ; pi(cq)
    v_lshl_add_u32 v23, v24, 3, v23
    s_mul_i32 s{gT0}, s{gWv}, 24576
    v_add_u32 v{vTr}, s{gT0}, v23
    s_lshl_b32 s{gT0}, s{gWv}, 12
    v_add_u32 v{vRW}, s{gT0}, v{vL16}
    s_lshl_b32 s{gT0}, s{gWv}, 10
    v_add_u32 v{vRR}, s{gT0}, v{vL16}
    v_and_b32 v20, 31, v{vLane}
    v_lshlrev_b32 v{vG}, 2, v20
    v_mul_u32_u24 v20, 1152, v20
    v_lshl_add_u32 v20, v22, 4, v20
    s_lshr_b32 s{gT0}, s{gWv}, 1
    s_lshl_b32 s{gT0}, s{gT0}, 5
    s_and_b32 s{gT1}, s{gWv}, 1
    s_lshl_b32 s{gT1}, s{gT1}, 3
    s_add_u32 s{gT0}, s{gT0}, s{gT1}
    s_lshl_b32 s{gT1}, s{gT}, 6
    s_add_u32 s{gT0}, s{gT0}, s{gT1}
    v_add_u32 v{vOo}, s{gT0}, v20
    s_waitcnt lgkmcnt(0)""")
    srd(a, S_OUT, gEX, gEX+1, 2048*576*2)
    loadW(a, KA_WD, 72)
    a(f"""s_barrier
    s_mov_b32 s{pSeg}, s{gX}
    s_mov_b32 s{pI}, {BST}
    s_mov_b32 s{pRed}, 0""")
    a.label("L_pb_loop")
    a(f"s_lshr_b32 s{gT0}, s{pSeg}, 3\ns_lshl_b32 s{gT0}, s{gT0}, 2")
    poll_ge(a, "L_pb_g1", DBG, f"s{gT0}", D_G1, 28, 8)
    a(f"""s_mul_i32 s{pBase}, s{pSeg}, {288*1024}
    s_mul_i32 s{gT0}, s{gWv}, {72*1024}
    s_add_u32 s{pBase}, s{pBase}, s{gT0}
    s_add_u32 s{pBase}, s{pBase}, {HF}""")
    job(a, 72)
    a(f"""v_add_u32 v20, s{pI}, v{vRR}
    ds_write_b128 v20, v[144:147]
    s_add_u32 s{pI}, s{pI}, 4096
    s_add_u32 s{pSeg}, s{pSeg}, 7
    s_cmp_lt_u32 s{pSeg}, 64
    s_cbranch_scc1 L_pb_loop
    s_waitcnt lgkmcnt(0)
    s_barrier""")
    loadW(a, KA_WO, 64)
    a(f"""s_barrier
    s_mov_b32 s{pSeg}, s{gX}
    s_mov_b32 s{pI}, {BST}""")
    a.label("L_pa_loop")
    a(f"""s_lshl_b32 s{gT0}, s{pSeg}, 7
    s_add_u32 s{gT1}, s{gT0}, {GBUF}
    buffer_load_dword v30, v{vG}, {WS}, s{gT1} offen sc1
    v_add_u32 v20, s{pI}, v{vRR}
    ds_read_b128 v[24:27], v20
    s_add_u32 s{gT0}, s{gT0}, {OCNT}""")
    poll_ge(a, "L_pa_oc", WS, f"s{gT0}", 0, 32, 2)
    a(f"""s_lshl_b32 s{pBase}, s{pSeg}, 18
    s_lshl_b32 s{gT0}, s{gWv}, 16
    s_add_u32 s{pBase}, s{pBase}, s{gT0}
    s_add_u32 s{pBase}, s{pBase}, {OF}""")
    job(a, 64)
    for r in range(4): a(f"v_sub_f32 v{144+r}, v{144+r}, v{24+r}")
    for r in range(4): a(f"v_fma_f32 v{144+r}, v{144+r}, v30, v{24+r}")
    a(f"""v_cvt_pk_bf16_f32 v144, v144, v145
    v_cvt_pk_bf16_f32 v145, v146, v147
    s_mul_i32 s{gT0}, s{pSeg}, {32*1152}
    buffer_store_dwordx2 v[144:145], v{vOo}, {OUTS}, s{gT0} offen
    s_add_u32 s{pI}, s{pI}, 4096
    s_add_u32 s{pSeg}, s{pSeg}, 7
    s_cmp_lt_u32 s{pSeg}, 64
    s_cbranch_scc1 L_pa_loop
    s_waitcnt vmcnt(0)
    s_endpgm""")
```

```python
from common import *
import chain4, gemm1, phase2
from gemm1 import gX, gT
NAME = "gated_mix__memory_aug_recurrent_mem_tr__glu_gated_bilinear__prompt"
def build(fake_xcc=None, timing=0, chain_kw={}):
    a = Asm()
    if timing: a("s_memtime s[94:95]")
    a(f"""s_cmp_ge_u32 s2, 256
    s_cbranch_scc1 L_exit
    s_load_dwordx2 s[4:5], s[0:1], {KA_WS}
    s_load_dwordx2 s[6:7], s[0:1], {KA_DBG}
    s_getreg_b32 s3, hwreg(HW_REG_XCC_ID)
    s_and_b32 s3, s3, 15""")
    if fake_xcc: a(fake_xcc)
    a("s_waitcnt lgkmcnt(0)")
    srd(a, S_WS, 4, 5, WS_BYTES); srd(a, S_DBG, 6, 7, 256)
    a(f"""v_lshrrev_b32 v16, 6, v0
    s_nop 0
    v_readfirstlane_b32 s20, v16
    s_cmp_lg_u32 s20, 0
    s_cbranch_scc1 L_role_wait
    s_min_u32 s21, s3, 8
    s_lshl_b32 s22, s21, 2
    v_mov_b32 v16, 1
    s_mov_b64 exec, 1
    buffer_atomic_add v16, off, {DBG}, s22 offset:{D_TICK} sc0
    s_waitcnt vmcnt(0)
    v_readfirstlane_b32 s23, v16
    s_cmp_lt_u32 s21, 8
    s_cselect_b32 s24, s23, 32
    s_cmp_lt_u32 s24, 32
    s_cbranch_scc0 L_role_ovf
    s_lshl_b32 s24, s21, 5
    s_add_u32 s24, s24, s23
    s_branch L_role_pub
    L_role_ovf:
    v_mov_b32 v16, 1
    buffer_atomic_add v16, off, {DBG}, 0 offset:{D_OVF2} sc0
    s_waitcnt vmcnt(0)
    v_readfirstlane_b32 s25, v16
    s_mov_b32 s27, 0
    L_role_poll:
    s_add_u32 s27, s27, 1
    s_cmp_gt_u32 s27, 0x20000
    s_cbranch_scc1 L_abort
    buffer_load_dwordx4 v[20:23], off, {DBG}, 0 offset:{D_TICK} sc1
    buffer_load_dwordx4 v[24:27], off, {DBG}, 0 offset:{D_TICK+16} sc1
    buffer_load_dword v28, off, {DBG}, 0 offset:{D_TICK+32} sc1
    s_waitcnt vmcnt(0)
    v_add3_u32 v29, v20, v21, v22
    v_add3_u32 v29, v29, v23, v24
    v_add3_u32 v29, v29, v25, v26
    v_add3_u32 v29, v29, v27, v28
    s_nop 0
    v_readfirstlane_b32 s26, v29
    s_cmp_lt_u32 s26, 256
    s_cbranch_scc1 L_role_poll
    s_mov_b32 s24, 255""")
    for x in range(8):
        a(f"""v_readfirstlane_b32 s26, v{20+x}
        s_min_u32 s26, s26, 32
        s_sub_u32 s28, 32, s26
        s_add_u32 s29, s26, s25
        s_add_u32 s29, s29, {32*x}
        s_cmp_lt_u32 s25, s28
        s_cselect_b32 s24, s29, s24
        s_sub_u32 s25, s25, s28""")
    a(f"""L_role_pub:
    v_mov_b32 v16, s24
    v_mov_b32 v17, 0
    ds_write_b32 v17, v16
    s_waitcnt lgkmcnt(0)
    s_mov_b64 exec, -1
    L_role_wait:
    s_barrier
    v_mov_b32 v17, 0
    ds_read_b32 v16, v17
    s_waitcnt lgkmcnt(0)
    v_readfirstlane_b32 s24, v16
    s_barrier
    s_cmp_ge_u32 s24, 32
    s_cbranch_scc1 L_nonchain
    s_mov_b32 s{chain4.sH}, s24
    s_cmp_lg_u32 s3, 0
    s_cselect_b32 s{chain4.sSlow}, 1, 0""")
    chain4.chain_main(a, wait_kv=True, timing=timing, **chain_kw)
    a(f"""L_nonchain:
    s_lshr_b32 s{gX}, s24, 5
    s_sub_u32 s{gX}, s{gX}, 1
    s_and_b32 s{gT}, s24, 31""")
    gemm1.gemm1(a)
    a(f"s_cmp_ge_u32 s{gT}, 18\ns_cbranch_scc1 L_attn")
    phase2.proj(a)
    a.label("L_attn")
    phase2.attn(a)
    a("L_exit:\ns_endpgm")
    lines = autopad(a.lines)
    assert check(lines) == 0
    ref = open(f"cdna_kernels/{NAME}.s.ref").read().split("\n")
    hdr = [l for l in ref if l.startswith(";") and "@launch" not in l]
    k = NAME + "_kernel"
    return "\n".join(hdr) + "\n; @launch grid=(256,1,1) block=(256,1,1) lds=163840\n" + HEADER + kernel_begin(k) + "\n".join(lines) + "\n" + kernel_desc(k)
if __name__ == "__main__":
    open(f"cdna_kernels/{NAME}.s", "w").write(build())
    open("full_t.s", "w").write(build(timing=1))
    open("full_fake.s", "w").write(build(fake_xcc="s_lshr_b32 s3, s2, 6\ns_add_u32 s3, s3, 6"))
```
